```python
import torch

def _softmax(x, axis=-1):
    return torch.softmax(x, dim=axis)
def _gelu(x):
    return torch.nn.functional.gelu(x, approximate="tanh")
def _silu(x):
    return torch.nn.functional.silu(x)
def _sigmoid(x):
    return torch.sigmoid(x)
def _layernorm(x, axis=-1, eps=1e-5):
    m = x.mean(dim=axis, keepdim=True)
    v = x.var(dim=axis, keepdim=True, unbiased=False)
    return (x - m) / torch.sqrt(v + eps)
def _scatter_add(tgt, idx, src, axis=0):
    return tgt.clone().index_add_(axis, idx, src)
def _segment_sum(src, seg, n):
    out = torch.zeros((n,) + src.shape[1:], dtype=src.dtype)
    return out.index_add_(0, seg, src)
def _pad(x, pw):
    flat = tuple(v for pair in reversed(pw) for v in pair)
    return torch.nn.functional.pad(x, flat)

kernel_name = 'parallel_sum__linear_kernel_hedgehog__glu_gated_reglu__prompt'

def setup_inputs():

    _w = (lambda a: (lambda t: t.to(torch.bfloat16) if t.is_floating_point() else t)(torch.as_tensor(a)))
    def _A_setup():
        B, S, D, H = 1, 2048, 512, 32
        Dh = D // H
        return {
            "x": _w((lambda *s: torch.randn(*s, dtype=torch.bfloat16) * 0.05)(B, S, D)),
            "wqkv": _w((lambda *s: torch.randn(*s, dtype=torch.bfloat16) * 0.2)(D, 3 * D)),
            "w_phi": _w((lambda *s: torch.randn(*s, dtype=torch.bfloat16) * 0.2)(H, Dh, Dh) * (Dh ** -0.5)),
            "wo": _w((lambda *s: torch.randn(*s, dtype=torch.bfloat16) * 0.05)(D, D)),
        }
    _A_in = _A_setup()

    def _B_setup():
        B, S, D, F = 1, 2048, 512, 1792
        return {
            "x": _w((lambda *s: torch.randn(*s, dtype=torch.bfloat16) * 0.05)(B, S, D)),
            "W_gate": _w((lambda *s: torch.randn(*s, dtype=torch.bfloat16) * 0.4)(D, F) * (2.0 / D) ** 0.5),
            "W_up": _w((lambda *s: torch.randn(*s, dtype=torch.bfloat16) * 0.4)(D, F) * (2.0 / D) ** 0.5),
            "W_down": _w((lambda *s: torch.randn(*s, dtype=torch.bfloat16) * 0.4)(F, D) * (1.0 / F) ** 0.5),
        }
    _B_in = _B_setup()

    return {
        "A_x": _A_in["x"],
        "A_wqkv": _A_in["wqkv"],
        "A_w_phi": _A_in["w_phi"],
        "A_wo": _A_in["wo"],
        "B_x": _B_in["x"],
        "B_W_gate": _B_in["W_gate"],
        "B_W_up": _B_in["W_up"],
        "B_W_down": _B_in["W_down"],
    }

def reference(A_x, A_wqkv, A_w_phi, A_wo, B_x, B_W_gate, B_W_up, B_W_down):
    def _A_ref(x, wqkv, w_phi, wo):
        B, S, D = x.shape
        H = 32; Dh = D // H
        qkv = (lambda x, *d: x.permute(*d))((x @ wqkv).reshape(B, S, 3, H, Dh), 2, 0, 3, 1, 4)
        q, k, v = qkv[0], qkv[1], qkv[2]
        pq = torch.einsum("bhsd,hdf->bhsf", q, w_phi)
        pk = torch.einsum("bhsd,hdf->bhsf", k, w_phi)
        phi_q = torch.concatenate([_softmax(pq, axis=-1), _softmax(-pq, axis=-1)], axis=-1)
        phi_k = torch.concatenate([_softmax(pk, axis=-1), _softmax(-pk, axis=-1)], axis=-1)
        kv = torch.einsum("bhsf,bhsd->bhfd", phi_k, v)
        z  = torch.einsum("bhsf->bhf", phi_k)
        num = torch.einsum("bhqf,bhfd->bhqd", phi_q, kv)
        den = torch.einsum("bhqf,bhf->bhq", phi_q, z)[..., None] + 1e-6
        o = num / den
        return (lambda x, *d: x.permute(*d))(o, 0, 2, 1, 3).reshape(B, S, D) @ wo

    def _B_ref(x, W_gate, W_up, W_down):
        gate = torch.einsum("bsd,df->bsf", x, W_gate)
        up = torch.einsum("bsd,df->bsf", x, W_up)
        gate = gate * (lambda x, dt: x.to(dt))(gate > 0, gate.dtype)
        h = gate * up
        return torch.einsum("bsf,fd->bsd", h, W_down)

    x = A_x
    xn = _layernorm(x, axis=-1)
    return x + _A_ref(xn, A_wqkv, A_w_phi, A_wo) + _B_ref(xn, B_W_gate, B_W_up, B_W_down)
```

```python
import sys

NAME = "parallel_sum__linear_kernel_hedgehog__glu_gated_reglu__prompt"
OUT = f"cdna_kernels/{NAME}.s"

WS_XN = 0
WS_H = 2 << 20
WS_PQ = 9 << 20
WS_KV = 13 << 20
WS_Z = (13 << 20) + 65536

L2E = "0x3fb8aa3b"

lines = []


def E(s=""):
    lines.append(s)


def nop(n):
    while n > 0:
        k = min(n, 16)
        E(f"    s_nop {k-1}")
        n -= k


def wave_reduce(op, v, t):
    for r in (8, 4, 2, 1):
        nop(2)
        E(f"    v_{op}_dpp v{t}, v{v}, v{v} row_ror:{r} row_mask:0xf bank_mask:0xf")
        E(f"    v_mov_b32 v{v}, v{t}")
    group_reduce(op, v, t)


def group_reduce(op, v, t):
    E(f"    v_mov_b32 v{t}, v{v}")
    nop(2)
    E(f"    v_permlane16_swap_b32 v{v}, v{t}")
    nop(1)
    E(f"    v_{op} v{v}, v{v}, v{t}")
    E(f"    v_mov_b32 v{t}, v{v}")
    nop(2)
    E(f"    v_permlane32_swap_b32 v{v}, v{t}")
    nop(1)
    E(f"    v_{op} v{v}, v{v}, v{t}")


def kernel_header(name):
    E(f".globl {name}")
    E(".p2align 8")
    E(f".type {name},@function")
    E(f"{name}:")


def gen_k0():
    kernel_header("ln_kernel")
    E("    s_cmp_ge_u32 s2, 512")
    E("    s_cbranch_scc1 L0_end")
    E("    s_load_dwordx2 s[4:5], s[0:1], 0")
    E("    s_load_dwordx2 s[6:7], s[0:1], 80")
    E("    v_and_b32 v1, 63, v0")
    E("    v_lshrrev_b32 v2, 6, v0")
    E("    s_lshl_b32 s3, s2, 2")
    E("    v_add_u32 v3, s3, v2")
    E("    v_lshlrev_b32 v4, 10, v3")
    E("    v_lshl_add_u32 v4, v1, 4, v4")
    E("    s_waitcnt lgkmcnt(0)")
    E("    global_load_dwordx4 v[8:11], v4, s[4:5]")
    E("    s_cmp_ge_u32 s2, 32")
    E("    s_cbranch_scc1 L0_nozero")
    E("    v_lshlrev_b32 v5, 4, v0")
    E("    s_lshl_b32 s8, s2, 12")
    E(f"    s_add_u32 s8, s8, {WS_KV}")
    E("    v_add_u32 v5, s8, v5")
    for i in range(12, 16):
        E(f"    v_mov_b32 v{i}, 0")
    E("    global_store_dwordx4 v5, v[12:15], s[6:7]")
    E("L0_nozero:")
    E("    s_waitcnt vmcnt(0)")
    for i in range(4):
        E(f"    v_lshlrev_b32 v{16+2*i}, 16, v{8+i}")
        E(f"    v_and_b32 v{17+2*i}, 0xffff0000, v{8+i}")
    E("    v_add_f32 v24, v16, v17")
    for i in range(18, 24):
        E(f"    v_add_f32 v24, v24, v{i}")
    wave_reduce("add_f32", 24, 25)
    E("    v_mul_f32 v24, 0x3b000000, v24")
    E("    v_sub_f32 v26, v16, v24")
    E("    v_mul_f32 v27, v26, v26")
    for i in range(17, 24):
        E(f"    v_sub_f32 v26, v{i}, v24")
        E(f"    v_fmac_f32 v27, v26, v26")
    wave_reduce("add_f32", 27, 25)
    E("    v_mul_f32 v27, 0x3b000000, v27")
    E("    v_cvt_pk_bf16_f32 v28, v24, v27")
    E("    v_lshlrev_b32 v24, 16, v28")
    E("    v_and_b32 v27, 0xffff0000, v28")
    E("    v_add_f32 v27, 0x3727c5ac, v27")
    E("    v_cvt_pk_bf16_f32 v28, v27, v27")
    E("    v_and_b32 v27, 0xffff0000, v28")
    E("    v_sqrt_f32 v27, v27")
    nop(1)
    E("    v_cvt_pk_bf16_f32 v28, v27, v27")
    E("    v_and_b32 v27, 0xffff0000, v28")
    E("    v_rcp_f32 v27, v27")
    nop(1)
    for i in range(4):
        a, b = 16 + 2 * i, 17 + 2 * i
        E(f"    v_sub_f32 v{a}, v{a}, v24")
        E(f"    v_sub_f32 v{b}, v{b}, v24")
        E(f"    v_cvt_pk_bf16_f32 v28, v{a}, v{b}")
        E(f"    v_lshlrev_b32 v{a}, 16, v28")
        E(f"    v_and_b32 v{b}, 0xffff0000, v28")
        E(f"    v_mul_f32 v{a}, v{a}, v27")
        E(f"    v_mul_f32 v{b}, v{b}, v27")
        E(f"    v_cvt_pk_bf16_f32 v{8+i}, v{a}, v{b}")
    E("    v_lshrrev_b32 v12, 4, v3")
    E("    v_lshlrev_b32 v12, 4, v12")
    E("    v_lshrrev_b32 v13, 2, v1")
    E("    v_add_u32 v12, v12, v13")
    E("    v_lshlrev_b32 v12, 6, v12")
    E("    v_and_b32 v13, 15, v3")
    E("    v_add_u32 v12, v12, v13")
    E("    v_and_b32 v13, 1, v1")
    E("    v_lshlrev_b32 v13, 5, v13")
    E("    v_add_u32 v12, v12, v13")
    E("    v_lshlrev_b32 v12, 4, v12")
    E("    v_bfe_u32 v13, v1, 1, 1")
    E("    v_lshl_add_u32 v12, v13, 3, v12")
    if WS_XN:
        E(f"    v_add_u32 v12, {WS_XN}, v12")
    E("    global_store_dwordx2 v12, v[8:9], s[6:7]")
    E("    global_store_dwordx2 v12, v[10:11], s[6:7] offset:256")
    E("L0_end:")
    E("    s_endpgm")


A0 = 128


def k1_dma_setup(tag):
    E(f"    s_cmp_ge_u32 s19, 24")
    E(f"    s_cbranch_scc1 L1_dma_mlp_{tag}")
    E(f"    s_cmp_ge_u32 s19, 8")
    E(f"    s_cbranch_scc1 L1_dma_kv_{tag}")
    E(f"    s_lshl_b32 s31, s19, 7")
    E(f"    s_add_u32 s24, s4, s31")
    E(f"    s_addc_u32 s25, s5, 0")
    E(f"    s_add_u32 s26, s24, 64")
    E(f"    s_addc_u32 s27, s25, 0")
    E(f"    s_movk_i32 s28, 3072")
    E(f"    s_branch L1_dma_go_{tag}")
    E(f"L1_dma_kv_{tag}:")
    E(f"    s_sub_u32 s31, s19, 8")
    E(f"    s_lshl_b32 s31, s31, 6")
    E(f"    s_add_u32 s31, s31, 1024")
    E(f"    s_add_u32 s24, s4, s31")
    E(f"    s_addc_u32 s25, s5, 0")
    E(f"    s_add_u32 s26, s24, 1024")
    E(f"    s_addc_u32 s27, s25, 0")
    E(f"    s_movk_i32 s28, 3072")
    E(f"    s_branch L1_dma_go_{tag}")
    E(f"L1_dma_mlp_{tag}:")
    E(f"    s_sub_u32 s31, s19, 24")
    E(f"    s_lshl_b32 s31, s31, 6")
    E(f"    s_add_u32 s24, s8, s31")
    E(f"    s_addc_u32 s25, s9, 0")
    E(f"    s_add_u32 s26, s10, s31")
    E(f"    s_addc_u32 s27, s11, 0")
    E(f"    s_movk_i32 s28, 3584")
    E(f"L1_dma_go_{tag}:")
    E(f"    s_lshl_b32 s29, s28, 3")
    E(f"    v_cmp_le_u32 vcc, 2, v12")
    E(f"    v_mov_b32 v6, s24")
    E(f"    v_mov_b32 v7, s26")
    E(f"    v_cndmask_b32 v2, v6, v7, vcc")
    E(f"    v_mov_b32 v6, s25")
    E(f"    v_mov_b32 v7, s27")
    E(f"    v_cndmask_b32 v3, v6, v7, vcc")
    E(f"    v_mul_lo_u32 v6, v13, s28")
    E(f"    v_add_u32 v6, v6, v14")
    E(f"    v_add_co_u32 v2, vcc, v2, v6")
    E(f"    v_addc_co_u32 v3, vcc, 0, v3, vcc")


def k1_dma_issue(bufreg):
    E(f"    s_lshl_b32 s31, s16, 13")
    E(f"    s_add_u32 s31, s31, s{bufreg}")
    for i in range(8):
        E(f"    s_mov_b32 m0, s31")
        nop(1)
        E(f"    global_load_lds_dwordx4 v[2:3], off")
        if i < 7:
            E(f"    s_add_u32 s31, s31, 1024")
            E(f"    v_add_co_u32 v2, vcc, s29, v2")
            E(f"    v_addc_co_u32 v3, vcc, 0, v3, vcc")


def k1_main(kv):
    def reads(s, st):
        b = 32 + 8 * st
        E(f"    ds_read_b64_tr_b16 v[{b}:{b+1}], v4 offset:{s*4096}")
        E(f"    ds_read_b64_tr_b16 v[{b+2}:{b+3}], v4 offset:{s*4096+2048}")
        E(f"    ds_read_b64_tr_b16 v[{b+4}:{b+5}], v5 offset:{s*4096}")
        E(f"    ds_read_b64_tr_b16 v[{b+6}:{b+7}], v5 offset:{s*4096+2048}")
    for i in range(16, 32):
        E(f"    v_mov_b32 v{i}, 0")
    reads(0, 0)
    for s in range(16):
        st = s & 1
        if s < 15:
            reads(s + 1, st ^ 1)
            E("    s_waitcnt lgkmcnt(4)")
        else:
            E("    s_waitcnt lgkmcnt(0)")
        b = 32 + 8 * st
        for rt in range(2):
            xa = A0 + rt * 64 + s * 4
            acc = 16 + rt * 8
            E(f"    v_mfma_f32_16x16x32_bf16 v[{acc}:{acc+3}], v[{b}:{b+3}], v[{xa}:{xa+3}], v[{acc}:{acc+3}]")
            if kv:
                E(f"    v_mfma_f32_16x16x32_bf16 v[{acc+4}:{acc+7}], v[{xa}:{xa+3}], v[{b+4}:{b+7}], v[{acc+4}:{acc+7}]")
            else:
                E(f"    v_mfma_f32_16x16x32_bf16 v[{acc+4}:{acc+7}], v[{b+4}:{b+7}], v[{xa}:{xa+3}], v[{acc+4}:{acc+7}]")
    E("    s_waitcnt vmcnt(0)")
    nop(10)


def load_wphi(hs, dst):
    E(f"    s_lshl_b32 s31, s{hs}, 9")
    E(f"    s_add_u32 s32, s6, s31")
    E(f"    s_addc_u32 s33, s7, 0")
    for j in range(4):
        E(f"    global_load_ushort v{48+j}, v15, s[32:33] offset:{j*32}")
    E("    s_waitcnt vmcnt(0)")
    E(f"    v_lshl_or_b32 v{dst}, v49, 16, v48")
    E(f"    v_lshl_or_b32 v{dst+1}, v51, 16, v50")


def bf16_round(regs, t):
    a, b, c, d = regs
    E(f"    v_cvt_pk_bf16_f32 v{t}, v{a}, v{b}")
    E(f"    v_cvt_pk_bf16_f32 v{t+1}, v{c}, v{d}")
    E(f"    v_lshlrev_b32 v{a}, 16, v{t}")
    E(f"    v_and_b32 v{b}, 0xffff0000, v{t}")
    E(f"    v_lshlrev_b32 v{c}, 16, v{t+1}")
    E(f"    v_and_b32 v{d}, 0xffff0000, v{t+1}")


def softmax_pm(p, ep, em, reduce_fn):
    pass


def gen_k1():
    kernel_header("gemm1_kernel")
    E("    s_cmp_ge_u32 s2, 256")
    E("    s_cbranch_scc1 L1_end")
    E("    s_load_dwordx4 s[4:7], s[0:1], 8")
    E("    s_load_dwordx4 s[8:11], s[0:1], 40")
    E("    s_load_dwordx2 s[12:13], s[0:1], 80")
    E("    v_and_b32 v1, 63, v0")
    E("    v_lshrrev_b32 v6, 6, v0")
    nop(1)
    E("    v_readfirstlane_b32 s16, v6")
    E("    s_lshr_b32 s14, s2, 4")
    E("    s_and_b32 s15, s2, 15")
    E("    s_and_b32 s17, s16, 3")
    E("    s_lshr_b32 s18, s16, 2")
    E("    s_mul_i32 s19, s15, 5")
    E("    s_mov_b32 s20, 0")
    E("    s_mov_b32 s30, 0")
    E("    v_bfe_u32 v6, v1, 1, 2")
    E("    v_bfe_u32 v7, v1, 4, 2")
    E("    v_xor_b32 v12, v6, v7")
    E("    v_lshrrev_b32 v13, 3, v1")
    E("    s_lshl_b32 s31, s16, 6")
    E("    v_add_u32 v13, s31, v13")
    E("    v_and_b32 v6, 1, v12")
    E("    v_lshlrev_b32 v14, 5, v6")
    E("    v_and_b32 v6, 1, v1")
    E("    v_lshl_add_u32 v14, v6, 4, v14")
    E("    v_lshrrev_b32 v6, 4, v1")
    E("    v_lshlrev_b32 v15, 7, v6")
    E("    v_and_b32 v7, 15, v1")
    E("    v_lshl_add_u32 v15, v7, 1, v15")
    E("    v_bfe_u32 v7, v1, 2, 2")
    E("    v_lshl_add_u32 v8, v6, 2, v7")
    E("    v_lshlrev_b32 v8, 7, v8")
    E("    v_and_b32 v9, 3, v1")
    E("    v_lshl_add_u32 v8, v9, 3, v8")
    E("    v_lshrrev_b32 v9, 1, v7")
    E("    v_lshl_add_u32 v9, v6, 1, v9")
    E("    v_and_b32 v9, 3, v9")
    E("    v_xor_b32 v10, s18, v9")
    E("    v_lshl_add_u32 v4, v10, 5, v8")
    E("    v_xor_b32 v10, 2, v10")
    E("    v_lshl_add_u32 v5, v10, 5, v8")
    E("    s_waitcnt lgkmcnt(0)")
    E("    s_lshl_b32 s31, s14, 3")
    E("    s_lshl_b32 s32, s17, 1")
    E("    s_add_u32 s31, s31, s32")
    E("    s_lshl_b32 s31, s31, 14")
    E("    s_add_u32 s32, s12, s31")
    E("    s_addc_u32 s33, s13, 0")
    E("    v_lshlrev_b32 v6, 4, v1")
    for i in range(32):
        E(f"    global_load_dwordx4 v[{A0+4*i}:{A0+4*i+3}], v6, s[32:33]")
        E("    s_add_u32 s32, s32, 1024")
        E("    s_addc_u32 s33, s33, 0")
    k1_dma_setup("pro")
    k1_dma_issue(30)
    E("    s_waitcnt vmcnt(0)")
    E("L1_loop:")
    E("    s_barrier")
    E("    s_cmp_ge_u32 s20, 4")
    E("    s_cbranch_scc1 L1_nodma")
    E("    s_add_u32 s19, s19, 1")
    k1_dma_setup("loop")
    E("    s_sub_u32 s19, s19, 1")
    E("    s_xor_b32 s34, s30, 0x10000")
    k1_dma_issue(34)
    E("L1_nodma:")
    E("    s_cmp_ge_u32 s19, 8")
    E("    s_cbranch_scc0 L1_main_std")
    E("    s_cmp_ge_u32 s19, 24")
    E("    s_cbranch_scc1 L1_main_std")
    k1_main(True)
    E("    s_sub_u32 s21, s19, 8")
    E("    s_lshl_b32 s21, s21, 1")
    E("    s_add_u32 s21, s21, s18")
    load_wphi(21, 52)
    for rt in range(2):
        acc = 16 + rt * 8
        E(f"    v_cvt_pk_bf16_f32 v54, v{acc}, v{acc+1}")
        E(f"    v_cvt_pk_bf16_f32 v55, v{acc+2}, v{acc+3}")
        for i in range(4):
            E(f"    v_mov_b32 v{56+i}, 0")
        nop(2)
        E("    v_mfma_f32_16x16x16_bf16 v[56:59], v[54:55], v[52:53], v[56:59]")
        nop(10)
        bf16_round([56, 57, 58, 59], 60)
        for i in range(4):
            E(f"    v_mov_b32 v{64+i}, v{56+i}")
            E(f"    v_mov_b32 v{68+i}, v{56+i}")
        for r in (8, 4, 2, 1):
            nop(1)
            for i in range(4):
                E(f"    v_max_f32_dpp v{72+i}, v{64+i}, v{64+i} row_ror:{r} row_mask:0xf bank_mask:0xf")
                E(f"    v_min_f32_dpp v{76+i}, v{68+i}, v{68+i} row_ror:{r} row_mask:0xf bank_mask:0xf")
            for i in range(4):
                E(f"    v_mov_b32 v{64+i}, v{72+i}")
                E(f"    v_mov_b32 v{68+i}, v{76+i}")
        for i in range(4):
            E(f"    v_sub_f32 v{72+i}, v{56+i}, v{64+i}")
            E(f"    v_sub_f32 v{76+i}, v{68+i}, v{56+i}")
        for i in range(8):
            E(f"    v_mul_f32 v{72+i}, {L2E}, v{72+i}")
        for i in range(8):
            E(f"    v_exp_f32 v{72+i}, v{72+i}")
        nop(1)
        for i in range(8):
            E(f"    v_mov_b32 v{64+i}, v{72+i}")
        for r in (8, 4, 2, 1):
            nop(1)
            for i in range(8):
                E(f"    v_add_f32_dpp v{80+i}, v{64+i}, v{64+i} row_ror:{r} row_mask:0xf bank_mask:0xf")
            for i in range(8):
                E(f"    v_mov_b32 v{64+i}, v{80+i}")
        for i in range(8):
            E(f"    v_rcp_f32 v{64+i}, v{64+i}")
        nop(1)
        for i in range(8):
            E(f"    v_mul_f32 v{72+i}, v{72+i}, v{64+i}")
        E(f"    v_cvt_pk_bf16_f32 v{88+2*rt}, v72, v73")
        E(f"    v_cvt_pk_bf16_f32 v{89+2*rt}, v74, v75")
        E(f"    v_cvt_pk_bf16_f32 v{92+2*rt}, v76, v77")
        E(f"    v_cvt_pk_bf16_f32 v{93+2*rt}, v78, v79")
        E(f"    v_cvt_pk_bf16_f32 v{96+2*rt}, v{acc+4}, v{acc+5}")
        E(f"    v_cvt_pk_bf16_f32 v{97+2*rt}, v{acc+6}, v{acc+7}")
    for i in range(4):
        E(f"    v_mov_b32 v{100+i}, 0x3f803f80")
    for i in range(16):
        E(f"    v_mov_b32 v{104+i}, 0")
    nop(2)
    E("    v_mfma_f32_16x16x32_bf16 v[104:107], v[88:91], v[96:99], v[104:107]")
    E("    v_mfma_f32_16x16x32_bf16 v[108:111], v[92:95], v[96:99], v[108:111]")
    E("    v_mfma_f32_16x16x32_bf16 v[112:115], v[88:91], v[100:103], v[112:115]")
    E("    v_mfma_f32_16x16x32_bf16 v[116:119], v[92:95], v[100:103], v[116:119]")
    nop(12)
    E("    s_lshl_b32 s31, s21, 11")
    E(f"    s_add_u32 s31, s31, {WS_KV}")
    E("    s_add_u32 s32, s12, s31")
    E("    s_addc_u32 s33, s13, 0")
    E("    v_lshlrev_b32 v48, 2, v1")
    for i in range(8):
        E(f"    global_atomic_add_f32 v48, v{104+i}, s[32:33] offset:{i*256}")
    E("    s_add_u32 s32, s32, 65536")
    E("    s_addc_u32 s33, s33, 0")
    for i in range(8):
        E(f"    global_atomic_add_f32 v48, v{112+i}, s[32:33] offset:{i*256}")
    E("    s_branch L1_next")
    E("L1_main_std:")
    k1_main(False)
    E("    s_cmp_ge_u32 s19, 8")
    E("    s_cbranch_scc1 L1_ep_mlp")
    for tb in range(2):
        E("    s_lshl_b32 s21, s19, 2")
        E(f"    s_add_u32 s21, s21, {2*tb}")
        E("    s_add_u32 s21, s21, s18")
        load_wphi(21, 52)
        E("    s_lshl_b32 s31, s21, 7")
        E("    s_lshl_b32 s34, s14, 3")
        E("    s_add_u32 s31, s31, s34")
        E("    s_lshl_b32 s34, s17, 1")
        E("    s_add_u32 s31, s31, s34")
        E("    s_lshl_b32 s31, s31, 10")
        E(f"    s_add_u32 s31, s31, {WS_PQ}")
        E("    s_add_u32 s32, s12, s31")
        E("    s_addc_u32 s33, s13, 0")
        for rt in range(2):
            acc = 16 + rt * 8 + tb * 4
            E(f"    v_cvt_pk_bf16_f32 v54, v{acc}, v{acc+1}")
            E(f"    v_cvt_pk_bf16_f32 v55, v{acc+2}, v{acc+3}")
            for i in range(4):
                E(f"    v_mov_b32 v{56+i}, 0")
            nop(2)
            E("    v_mfma_f32_16x16x16_bf16 v[56:59], v[52:53], v[54:55], v[56:59]")
            nop(10)
            bf16_round([56, 57, 58, 59], 60)
            E("    v_max_f32 v64, v56, v57")
            E("    v_max3_f32 v64, v64, v58, v59")
            E("    v_min_f32 v65, v56, v57")
            E("    v_min3_f32 v65, v65, v58, v59")
            group_reduce("max_f32", 64, 66)
            group_reduce("min_f32", 65, 66)
            for i in range(4):
                E(f"    v_sub_f32 v{72+i}, v{56+i}, v64")
                E(f"    v_sub_f32 v{76+i}, v65, v{56+i}")
            for i in range(8):
                E(f"    v_mul_f32 v{72+i}, {L2E}, v{72+i}")
            for i in range(8):
                E(f"    v_exp_f32 v{72+i}, v{72+i}")
            nop(1)
            E("    v_add_f32 v64, v72, v73")
            E("    v_add_f32 v64, v64, v74")
            E("    v_add_f32 v64, v64, v75")
            E("    v_add_f32 v65, v76, v77")
            E("    v_add_f32 v65, v65, v78")
            E("    v_add_f32 v65, v65, v79")
            group_reduce("add_f32", 64, 66)
            group_reduce("add_f32", 65, 66)
            E("    v_rcp_f32 v64, v64")
            E("    v_rcp_f32 v65, v65")
            nop(1)
            for i in range(4):
                E(f"    v_mul_f32 v{72+i}, v{72+i}, v64")
                E(f"    v_mul_f32 v{76+i}, v{76+i}, v65")
            E("    v_cvt_pk_bf16_f32 v84, v72, v73")
            E("    v_cvt_pk_bf16_f32 v85, v74, v75")
            E("    v_cvt_pk_bf16_f32 v86, v76, v77")
            E("    v_cvt_pk_bf16_f32 v87, v78, v79")
            E("    v_lshlrev_b32 v48, 4, v1")
            E(f"    global_store_dwordx4 v48, v[84:87], s[32:33] offset:{rt*1024}")
            nop(2)
    E("    s_branch L1_next")
    E("L1_ep_mlp:")
    E("    s_lshl_b32 s31, s14, 3")
    E("    s_lshl_b32 s34, s17, 1")
    E("    s_add_u32 s31, s31, s34")
    E("    s_mul_i32 s31, s31, 56")
    E("    s_add_u32 s31, s31, s19")
    E("    s_sub_u32 s31, s31, 24")
    E("    s_lshl_b32 s31, s31, 10")
    E("    s_lshl_b32 s34, s18, 3")
    E("    s_add_u32 s31, s31, s34")
    E(f"    s_add_u32 s31, s31, {WS_H}")
    E("    s_add_u32 s32, s12, s31")
    E("    s_addc_u32 s33, s13, 0")
    E("    v_lshlrev_b32 v48, 4, v1")
    for rt in range(2):
        acc = 16 + rt * 8
        for i in range(4):
            E(f"    v_max_f32 v{56+i}, 0, v{acc+i}")
        bf16_round([56, 57, 58, 59], 60)
        bf16_round([acc + 4, acc + 5, acc + 6, acc + 7], 60)
        for i in range(4):
            E(f"    v_mul_f32 v{56+i}, v{56+i}, v{acc+4+i}")
        E("    v_cvt_pk_bf16_f32 v84, v56, v57")
        E("    v_cvt_pk_bf16_f32 v85, v58, v59")
        if rt == 0:
            E(f"    global_store_dwordx2 v48, v[84:85], s[32:33]")
        else:
            E(f"    s_add_u32 s32, s32, {56*1024}")
            E("    s_addc_u32 s33, s33, 0")
            E(f"    global_store_dwordx2 v48, v[84:85], s[32:33]")
        nop(2)
    E("L1_next:")
    E("    v_xor_b32 v4, 0x10000, v4")
    E("    v_xor_b32 v5, 0x10000, v5")
    E("    s_xor_b32 s30, s30, 0x10000")
    E("    s_add_u32 s19, s19, 1")
    E("    s_add_u32 s20, s20, 1")
    E("    s_cmp_lt_u32 s20, 5")
    E("    s_cbranch_scc1 L1_loop")
    E("L1_end:")
    E("    s_endpgm")


def gen_k2():
    ACC = 192
    AS = 96
    BS = 144
    kernel_header("gemm2_kernel")
    E("    s_cmp_ge_u32 s2, 256")
    E("    s_cbranch_scc1 L2_end")
    E("    s_load_dwordx2 s[4:5], s[0:1], 0")
    E("    s_load_dwordx2 s[6:7], s[0:1], 24")
    E("    s_load_dwordx2 s[8:9], s[0:1], 56")
    E("    s_load_dwordx2 s[10:11], s[0:1], 64")
    E("    s_load_dwordx2 s[12:13], s[0:1], 80")
    E("    v_and_b32 v1, 63, v0")
    E("    v_lshrrev_b32 v6, 6, v0")
    nop(1)
    E("    v_readfirstlane_b32 s16, v6")
    E("    s_lshr_b32 s14, s2, 3")
    E("    s_and_b32 s15, s2, 7")
    E("    s_mul_i32 s17, s16, 12288")
    E("    v_bfe_u32 v6, v1, 1, 2")
    E("    v_bfe_u32 v7, v1, 4, 2")
    E("    v_xor_b32 v6, v6, v7")
    E("    v_lshlrev_b32 v2, 5, v6")
    E("    v_lshrrev_b32 v7, 3, v1")
    E("    v_lshl_add_u32 v2, v7, 10, v2")
    E("    v_and_b32 v7, 1, v1")
    E("    v_lshl_add_u32 v2, v7, 4, v2")
    E("    s_lshl_b32 s31, s15, 7")
    E("    v_add_u32 v2, s31, v2")
    E("    v_lshrrev_b32 v6, 4, v1")
    E("    v_bfe_u32 v7, v1, 2, 2")
    E("    v_lshl_add_u32 v12, v6, 2, v7")
    E("    v_lshlrev_b32 v12, 7, v12")
    E("    v_and_b32 v13, 3, v1")
    E("    v_lshl_add_u32 v12, v13, 3, v12")
    E("    v_add_u32 v12, s17, v12")
    E("    v_lshrrev_b32 v13, 1, v7")
    E("    v_lshl_add_u32 v13, v6, 1, v13")
    E("    v_and_b32 v13, 3, v13")
    for T in range(4):
        E(f"    v_xor_b32 v14, {T}, v13")
        E(f"    v_lshl_add_u32 v{8+T}, v14, 5, v12")
    E("    v_lshlrev_b32 v3, 4, v1")
    E("    v_lshlrev_b32 v4, 2, v1")
    for i in range(64):
        E(f"    v_mov_b32 v{ACC+i}, 0")
    E("    s_waitcnt lgkmcnt(0)")

    def dma(base_lo, trow_sreg, slot):
        E(f"    s_lshl_b32 s31, s{trow_sreg}, 15")
        E(f"    s_add_u32 s32, s{base_lo}, s31")
        E(f"    s_addc_u32 s33, s{base_lo+1}, 0")
        E(f"    s_add_u32 s34, s17, {slot*4096}")
        for i in range(4):
            E(f"    s_mov_b32 m0, s34")
            nop(1)
            E(f"    global_load_lds_dwordx4 v2, s[32:33]")
            if i < 3:
                E(f"    s_add_u32 s34, s34, 1024")
                E(f"    s_add_u32 s32, s32, 8192")
                E(f"    s_addc_u32 s33, s33, 0")

    def bread(slot):
        for T in range(4):
            E(f"    ds_read_b64_tr_b16 v[{BS+4*T}:{BS+4*T+1}], v{8+T} offset:{slot*4096}")
            E(f"    ds_read_b64_tr_b16 v[{BS+4*T+2}:{BS+4*T+3}], v{8+T} offset:{slot*4096+2048}")

    def mfmas(aset):
        for rt in range(4):
            a = AS + aset * 16 + rt * 4
            for ct in range(4):
                c = ACC + (rt * 4 + ct) * 4
                b = BS + 4 * ct
                E(f"    v_mfma_f32_16x16x32_bf16 v[{c}:{c+3}], v[{b}:{b+3}], v[{a}:{a+3}], v[{c}:{c+3}]")

    for os_ in range(2):
        E(f"    s_lshl_b32 s20, s16, 1")
        if os_:
            E(f"    s_add_u32 s20, s20, 1")
        dma(6, 20, 0)
        for hh in range(2):
            E(f"    s_lshl_b32 s21, s20, 1")
            if hh:
                E(f"    s_add_u32 s21, s21, 1")
            E(f"    s_lshl_b32 s31, s21, 11")
            E(f"    s_add_u32 s31, s31, {WS_KV}")
            E(f"    s_add_u32 s32, s12, s31")
            E(f"    s_addc_u32 s33, s13, 0")
            for i in range(8):
                E(f"    global_load_dword v{20+i}, v4, s[32:33] offset:{i*256}")
            E(f"    s_add_u32 s32, s32, 65536")
            E(f"    s_addc_u32 s33, s33, 0")
            for i in range(8):
                E(f"    global_load_dword v{28+i}, v4, s[32:33] offset:{i*256}")
            E(f"    s_lshl_b32 s31, s21, 7")
            E(f"    s_lshl_b32 s34, s14, 2")
            E(f"    s_add_u32 s31, s31, s34")
            E(f"    s_lshl_b32 s31, s31, 10")
            E(f"    s_add_u32 s31, s31, {WS_PQ}")
            E(f"    s_add_u32 s32, s12, s31")
            E(f"    s_addc_u32 s33, s13, 0")
            for rt in range(4):
                E(f"    global_load_dwordx4 v[{36+4*rt}:{39+4*rt}], v3, s[32:33] offset:{rt*1024}")
            E("    s_waitcnt vmcnt(0)")
            for i in range(4):
                E(f"    v_cvt_pk_bf16_f32 v{52+i}, v{20+2*i}, v{21+2*i}")
                E(f"    v_cvt_pk_bf16_f32 v{56+i}, v{28+2*i}, v{29+2*i}")
            for rt in range(4):
                for i in range(8):
                    E(f"    v_mov_b32 v{60+i}, 0")
                nop(2)
                E(f"    v_mfma_f32_16x16x32_bf16 v[60:63], v[52:55], v[{36+4*rt}:{39+4*rt}], v[60:63]")
                E(f"    v_mfma_f32_16x16x32_bf16 v[64:67], v[56:59], v[{36+4*rt}:{39+4*rt}], v[64:67]")
                nop(12)
                E("    v_add_f32 v64, 0x358637bd, v64")
                E("    v_rcp_f32 v64, v64")
                nop(1)
                for i in range(4):
                    E(f"    v_mul_f32 v{60+i}, v{60+i}, v64")
                a = AS + rt * 4 + hh * 2
                E(f"    v_cvt_pk_bf16_f32 v{a}, v60, v61")
                E(f"    v_cvt_pk_bf16_f32 v{a+1}, v62, v63")
        bread(0)
        E("    s_waitcnt lgkmcnt(0)")
        mfmas(0)
        nop(2)
    E("    s_mul_i32 s20, s16, 7")
    E("    s_lshl_b32 s22, s14, 2")
    E("    s_mul_i32 s22, s22, 56")
    E("    s_add_u32 s22, s22, s20")
    E("    s_lshl_b32 s22, s22, 10")
    E(f"    s_add_u32 s22, s22, {WS_H}")
    E("    s_add_u32 s24, s12, s22")
    E("    s_addc_u32 s25, s13, 0")

    def hload(n):
        slot = n % 3
        E(f"    s_add_u32 s21, s20, {n}")
        dma(8, 21, slot)
        E(f"    s_add_u32 s26, s24, {n*1024}")
        E(f"    s_addc_u32 s27, s25, 0")
        for rt in range(4):
            a = AS + slot * 16 + rt * 4
            E(f"    global_load_dwordx4 v[{a}:{a+3}], v3, s[26:27]")
            if rt < 3:
                E(f"    s_add_u32 s26, s26, {56*1024}")
                E(f"    s_addc_u32 s27, s27, 0")
    hload(0)
    hload(1)
    for n in range(7):
        if n + 2 < 7:
            hload(n + 2)
        later = min(7, n + 3) - (n + 1)
        E(f"    s_waitcnt vmcnt({8*later})")
        bread(n % 3)
        E("    s_waitcnt lgkmcnt(0)")
        mfmas(n % 3)
    nop(12)
    E("    s_barrier")
    E("    s_lshl_b32 s31, s16, 14")
    E("    v_add_u32 v5, s31, v3")
    for i in range(16):
        E(f"    ds_write_b128 v5, v[{ACC+4*i}:{ACC+4*i+3}] offset:{i*1024}")
    E("    s_waitcnt lgkmcnt(0)")
    E("    s_barrier")
    E("    s_lshl_b32 s31, s16, 11")
    E("    v_add_u32 v5, s31, v3")
    E("    v_add_u32 v15, 0x10000, v5")
    for tt in range(2):
        for src in range(8):
            E(f"    ds_read_b128 v[{20+4*src}:{23+4*src}], v{5 if src < 4 else 15} offset:{(src&3)*16384+tt*1024}")
        E("    s_waitcnt lgkmcnt(0)")
        for src in range(1, 8):
            for i in range(4):
                E(f"    v_add_f32 v{20+i}, v{20+i}, v{20+4*src+i}")
        E("    s_lshr_b32 s31, s16, 1")
        E("    s_lshl_b32 s31, s31, 4")
        E("    s_lshl_b32 s34, s14, 6")
        E("    s_add_u32 s31, s31, s34")
        E("    v_and_b32 v6, 15, v1")
        E("    v_add_u32 v6, s31, v6")
        E("    v_lshlrev_b32 v6, 10, v6")
        E("    s_and_b32 s31, s16, 1")
        E("    s_lshl_b32 s31, s31, 6")
        E(f"    s_add_u32 s31, s31, {tt*32}")
        E("    s_lshl_b32 s34, s15, 7")
        E("    s_add_u32 s31, s31, s34")
        E("    v_lshrrev_b32 v7, 4, v1")
        E("    v_lshl_add_u32 v6, v7, 3, v6")
        E("    v_add_u32 v6, s31, v6")
        E("    global_load_dwordx2 v[60:61], v6, s[4:5]")
        E("    s_waitcnt vmcnt(0)")
        E("    v_lshlrev_b32 v62, 16, v60")
        E("    v_and_b32 v63, 0xffff0000, v60")
        E("    v_add_f32 v20, v20, v62")
        E("    v_add_f32 v21, v21, v63")
        E("    v_lshlrev_b32 v62, 16, v61")
        E("    v_and_b32 v63, 0xffff0000, v61")
        E("    v_add_f32 v22, v22, v62")
        E("    v_add_f32 v23, v23, v63")
        E("    v_cvt_pk_bf16_f32 v60, v20, v21")
        E("    v_cvt_pk_bf16_f32 v61, v22, v23")
        E("    global_store_dwordx2 v6, v[60:61], s[10:11]")
    E("L2_end:")
    E("    s_endpgm")


def descriptor(name, vgpr, sgpr=102):
    acc = (vgpr + 3) // 4 * 4
    E(f".amdhsa_kernel {name}")
    E(f"  .amdhsa_next_free_vgpr {vgpr}")
    E(f"  .amdhsa_next_free_sgpr {sgpr}")
    E(f"  .amdhsa_accum_offset {acc}")
    E("  .amdhsa_group_segment_fixed_size 0")
    E("  .amdhsa_kernarg_size 88")
    E("  .amdhsa_user_sgpr_count 2")
    E("  .amdhsa_user_sgpr_kernarg_segment_ptr 1")
    E("  .amdhsa_system_sgpr_workgroup_id_x 1")
    E(".end_amdhsa_kernel")


def main():
    E("; generated by gen.py")
    E("; @launch kernel=ln_kernel grid=(512,1,1) block=(256,1,1) lds=0")
    E("; @launch kernel=gemm1_kernel grid=(256,1,1) block=(512,1,1) lds=131072")
    E("; @launch kernel=gemm2_kernel grid=(256,1,1) block=(512,1,1) lds=131072")
    E('.amdgcn_target "amdgcn-amd-amdhsa--gfx950"')
    E(".text")
    gen_k0()
    gen_k1()
    gen_k2()
    E('.section .rodata,"a"')
    E(".p2align 6")
    descriptor("ln_kernel", 32, 32)
    descriptor("gemm1_kernel", 256)
    descriptor("gemm2_kernel", 256)
    open(OUT, "w").write("\n".join(lines) + "\n")


main()
```

```python
import sys, os
FL=os.environ.get("FL","").split(",")

NAME = "parallel_sum__linear_kernel_hedgehog__glu_gated_reglu__prompt"
OUT = f"cdna_kernels/{NAME}.s"

WS_XN = 0
WS_H = 2 << 20
WS_PQ = 9 << 20
WS_KV = 13 << 20
WS_Z = (13 << 20) + 65536

L2E = "0x3fb8aa3b"

lines = []


def E(s=""):
    lines.append(s)


def nop(n):
    while n > 0:
        k = min(n, 16)
        E(f"    s_nop {k-1}")
        n -= k


def wave_reduce(op, v, t):
    for r in (8, 4, 2, 1):
        nop(2)
        E(f"    v_{op}_dpp v{t}, v{v}, v{v} row_ror:{r} row_mask:0xf bank_mask:0xf")
        E(f"    v_mov_b32 v{v}, v{t}")
    group_reduce(op, v, t)


def group_reduce(op, v, t):
    E(f"    v_mov_b32 v{t}, v{v}")
    nop(2)
    E(f"    v_permlane16_swap_b32 v{v}, v{t}")
    nop(1)
    E(f"    v_{op} v{v}, v{v}, v{t}")
    E(f"    v_mov_b32 v{t}, v{v}")
    nop(2)
    E(f"    v_permlane32_swap_b32 v{v}, v{t}")
    nop(1)
    E(f"    v_{op} v{v}, v{v}, v{t}")


def kernel_header(name):
    E(f".globl {name}")
    E(".p2align 8")
    E(f".type {name},@function")
    E(f"{name}:")


def gen_k0():
    kernel_header("ln_kernel")
    E("    s_cmp_ge_u32 s2, 512")
    E("    s_cbranch_scc1 L0_end")
    E("    s_load_dwordx2 s[4:5], s[0:1], 0")
    E("    s_load_dwordx2 s[6:7], s[0:1], 80")
    E("    v_and_b32 v1, 63, v0")
    E("    v_lshrrev_b32 v2, 6, v0")
    E("    s_lshl_b32 s3, s2, 2")
    E("    v_add_u32 v3, s3, v2")
    E("    v_lshlrev_b32 v4, 10, v3")
    E("    v_lshl_add_u32 v4, v1, 4, v4")
    E("    s_waitcnt lgkmcnt(0)")
    E("    global_load_dwordx4 v[8:11], v4, s[4:5]")
    E("    s_cmp_ge_u32 s2, 32")
    E("    s_cbranch_scc1 L0_nozero")
    E("    v_lshlrev_b32 v5, 4, v0")
    E("    s_lshl_b32 s8, s2, 12")
    E(f"    s_add_u32 s8, s8, {WS_KV}")
    E("    v_add_u32 v5, s8, v5")
    for i in range(12, 16):
        E(f"    v_mov_b32 v{i}, 0")
    E("    global_store_dwordx4 v5, v[12:15], s[6:7]")
    E("L0_nozero:")
    E("    s_waitcnt vmcnt(0)")
    for i in range(4):
        E(f"    v_lshlrev_b32 v{16+2*i}, 16, v{8+i}")
        E(f"    v_and_b32 v{17+2*i}, 0xffff0000, v{8+i}")
    E("    v_add_f32 v24, v16, v17")
    for i in range(18, 24):
        E(f"    v_add_f32 v24, v24, v{i}")
    wave_reduce("add_f32", 24, 25)
    E("    v_mul_f32 v24, 0x3b000000, v24")
    E("    v_sub_f32 v26, v16, v24")
    E("    v_mul_f32 v27, v26, v26")
    for i in range(17, 24):
        E(f"    v_sub_f32 v26, v{i}, v24")
        E(f"    v_fmac_f32 v27, v26, v26")
    wave_reduce("add_f32", 27, 25)
    E("    v_mul_f32 v27, 0x3b000000, v27")
    E("    v_cvt_pk_bf16_f32 v28, v24, v27")
    E("    v_lshlrev_b32 v24, 16, v28")
    E("    v_and_b32 v27, 0xffff0000, v28")
    E("    v_add_f32 v27, 0x3727c5ac, v27")
    E("    v_cvt_pk_bf16_f32 v28, v27, v27")
    E("    v_and_b32 v27, 0xffff0000, v28")
    E("    v_sqrt_f32 v27, v27")
    nop(1)
    E("    v_cvt_pk_bf16_f32 v28, v27, v27")
    E("    v_and_b32 v27, 0xffff0000, v28")
    E("    v_rcp_f32 v27, v27")
    nop(1)
    for i in range(4):
        a, b = 16 + 2 * i, 17 + 2 * i
        E(f"    v_sub_f32 v{a}, v{a}, v24")
        E(f"    v_sub_f32 v{b}, v{b}, v24")
        E(f"    v_cvt_pk_bf16_f32 v28, v{a}, v{b}")
        E(f"    v_lshlrev_b32 v{a}, 16, v28")
        E(f"    v_and_b32 v{b}, 0xffff0000, v28")
        E(f"    v_mul_f32 v{a}, v{a}, v27")
        E(f"    v_mul_f32 v{b}, v{b}, v27")
        E(f"    v_cvt_pk_bf16_f32 v{8+i}, v{a}, v{b}")
    E("    v_lshrrev_b32 v12, 4, v3")
    E("    v_lshlrev_b32 v12, 4, v12")
    E("    v_lshrrev_b32 v13, 2, v1")
    E("    v_add_u32 v12, v12, v13")
    E("    v_lshlrev_b32 v12, 6, v12")
    E("    v_and_b32 v13, 15, v3")
    E("    v_add_u32 v12, v12, v13")
    E("    v_and_b32 v13, 1, v1")
    E("    v_lshlrev_b32 v13, 5, v13")
    E("    v_add_u32 v12, v12, v13")
    E("    v_lshlrev_b32 v12, 4, v12")
    E("    v_bfe_u32 v13, v1, 1, 1")
    E("    v_lshl_add_u32 v12, v13, 3, v12")
    if WS_XN:
        E(f"    v_add_u32 v12, {WS_XN}, v12")
    E("    global_store_dwordx2 v12, v[8:9], s[6:7]")
    E("    global_store_dwordx2 v12, v[10:11], s[6:7] offset:256")
    E("L0_end:")
    E("    s_endpgm")


A0 = 128


def k1_dma_setup(tag):
    E(f"    s_cmp_ge_u32 s19, 24")
    E(f"    s_cbranch_scc1 L1_dma_mlp_{tag}")
    E(f"    s_cmp_ge_u32 s19, 8")
    E(f"    s_cbranch_scc1 L1_dma_kv_{tag}")
    E(f"    s_lshl_b32 s31, s19, 7")
    E(f"    s_add_u32 s24, s4, s31")
    E(f"    s_addc_u32 s25, s5, 0")
    E(f"    s_add_u32 s26, s24, 64")
    E(f"    s_addc_u32 s27, s25, 0")
    E(f"    s_movk_i32 s28, 3072")
    E(f"    s_branch L1_dma_go_{tag}")
    E(f"L1_dma_kv_{tag}:")
    E(f"    s_sub_u32 s31, s19, 8")
    E(f"    s_lshl_b32 s31, s31, 6")
    E(f"    s_add_u32 s31, s31, 1024")
    E(f"    s_add_u32 s24, s4, s31")
    E(f"    s_addc_u32 s25, s5, 0")
    E(f"    s_add_u32 s26, s24, 1024")
    E(f"    s_addc_u32 s27, s25, 0")
    E(f"    s_movk_i32 s28, 3072")
    E(f"    s_branch L1_dma_go_{tag}")
    E(f"L1_dma_mlp_{tag}:")
    E(f"    s_sub_u32 s31, s19, 24")
    E(f"    s_lshl_b32 s31, s31, 6")
    E(f"    s_add_u32 s24, s8, s31")
    E(f"    s_addc_u32 s25, s9, 0")
    E(f"    s_add_u32 s26, s10, s31")
    E(f"    s_addc_u32 s27, s11, 0")
    E(f"    s_movk_i32 s28, 3584")
    E(f"L1_dma_go_{tag}:")
    E(f"    s_lshl_b32 s29, s28, 3")
    E(f"    v_cmp_le_u32 vcc, 2, v12")
    E(f"    v_mov_b32 v6, s24")
    E(f"    v_mov_b32 v7, s26")
    E(f"    v_cndmask_b32 v2, v6, v7, vcc")
    E(f"    v_mov_b32 v6, s25")
    E(f"    v_mov_b32 v7, s27")
    E(f"    v_cndmask_b32 v3, v6, v7, vcc")
    E(f"    v_mul_lo_u32 v6, v13, s28")
    E(f"    v_add_u32 v6, v6, v14")
    E(f"    v_add_co_u32 v2, vcc, v2, v6")
    E(f"    v_addc_co_u32 v3, vcc, 0, v3, vcc")


def k1_dma_issue(bufreg):
    E(f"    s_lshl_b32 s31, s16, 13")
    E(f"    s_add_u32 s31, s31, s{bufreg}")
    E(f"    v_lshlrev_b32 v11, 4, v1")
    E(f"    v_add_u32 v11, s31, v11")
    for i in range(8):
        E(f"    global_load_dwordx4 v[{48+4*i}:{51+4*i}], v[2:3], off")
        if i < 7:
            E(f"    v_add_co_u32 v2, vcc, s29, v2")
            E(f"    v_addc_co_u32 v3, vcc, 0, v3, vcc")


def k1_flush():
    for i in range(8):
        E(f"    ds_write_b128 v11, v[{48+4*i}:{51+4*i}] offset:{i*1024}")
    E("    s_waitcnt lgkmcnt(0)")


def k1_main(kv):
    def reads(s, st):
        b = 32 + 8 * st
        E(f"    ds_read_b64_tr_b16 v[{b}:{b+1}], v4 offset:{s*4096}")
        E(f"    ds_read_b64_tr_b16 v[{b+2}:{b+3}], v4 offset:{s*4096+2048}")
        E(f"    ds_read_b64_tr_b16 v[{b+4}:{b+5}], v5 offset:{s*4096}")
        E(f"    ds_read_b64_tr_b16 v[{b+6}:{b+7}], v5 offset:{s*4096+2048}")
    for i in range(16, 32):
        E(f"    v_mov_b32 v{i}, 0")
    reads(0, 0)
    for s in range(16):
        st = s & 1
        if s < 15:
            reads(s + 1, st ^ 1)
            E("    s_waitcnt lgkmcnt(4)")
        else:
            E("    s_waitcnt lgkmcnt(0)")
        b = 32 + 8 * st
        for rt in range(0 if "NOMFMA" in FL else 2):
            xa = A0 + rt * 64 + s * 4
            acc = 16 + rt * 8
            E(f"    v_mfma_f32_16x16x32_bf16 v[{acc}:{acc+3}], v[{b}:{b+3}], v[{xa}:{xa+3}], v[{acc}:{acc+3}]")
            if kv:
                E(f"    v_mfma_f32_16x16x32_bf16 v[{acc+4}:{acc+7}], v[{xa}:{xa+3}], v[{b+4}:{b+7}], v[{acc+4}:{acc+7}]")
            else:
                E(f"    v_mfma_f32_16x16x32_bf16 v[{acc+4}:{acc+7}], v[{b+4}:{b+7}], v[{xa}:{xa+3}], v[{acc+4}:{acc+7}]")
    E("    s_waitcnt vmcnt(0)")
    E("    s_cmp_ge_u32 s20, 4")
    E(f"    s_cbranch_scc1 L1_nofl_{int(kv)}")
    k1_flush()
    E(f"L1_nofl_{int(kv)}:")
    nop(10)


def issue_wphi(hs, raw):
    E(f"    s_lshl_b32 s31, s{hs}, 9")
    E(f"    s_add_u32 s32, s6, s31")
    E(f"    s_addc_u32 s33, s7, 0")
    for j in range(4):
        E(f"    global_load_ushort v{raw+j}, v15, s[32:33] offset:{j*32}")


def finish_wphi(raw, dst):
    E(f"    v_lshl_or_b32 v{dst}, v{raw+1}, 16, v{raw}")
    E(f"    v_lshl_or_b32 v{dst+1}, v{raw+3}, 16, v{raw+2}")


def load_wphi(hs, dst):
    E(f"    s_lshl_b32 s31, s{hs}, 9")
    E(f"    s_add_u32 s32, s6, s31")
    E(f"    s_addc_u32 s33, s7, 0")
    for j in range(4):
        E(f"    global_load_ushort v{48+j}, v15, s[32:33] offset:{j*32}")
    E("    s_waitcnt vmcnt(0)")
    E(f"    v_lshl_or_b32 v{dst}, v49, 16, v48")
    E(f"    v_lshl_or_b32 v{dst+1}, v51, 16, v50")


def bf16_round(regs, t):
    a, b, c, d = regs
    E(f"    v_cvt_pk_bf16_f32 v{t}, v{a}, v{b}")
    E(f"    v_cvt_pk_bf16_f32 v{t+1}, v{c}, v{d}")
    E(f"    v_lshlrev_b32 v{a}, 16, v{t}")
    E(f"    v_and_b32 v{b}, 0xffff0000, v{t}")
    E(f"    v_lshlrev_b32 v{c}, 16, v{t+1}")
    E(f"    v_and_b32 v{d}, 0xffff0000, v{t+1}")


def softmax_pm(p, ep, em, reduce_fn):
    pass


def gen_k1():
    kernel_header("gemm1_kernel")
    E("    s_cmp_ge_u32 s2, 256")
    E("    s_cbranch_scc1 L1_end")
    E("    s_load_dwordx4 s[4:7], s[0:1], 8")
    E("    s_load_dwordx4 s[8:11], s[0:1], 40")
    E("    s_load_dwordx2 s[12:13], s[0:1], 80")
    E("    v_and_b32 v1, 63, v0")
    E("    v_lshrrev_b32 v6, 6, v0")
    nop(1)
    E("    v_readfirstlane_b32 s16, v6")
    E("    s_lshr_b32 s14, s2, 4")
    E("    s_and_b32 s15, s2, 15")
    E("    s_and_b32 s17, s16, 3")
    E("    s_lshr_b32 s18, s16, 2")
    E("    s_mov_b32 s19, s15")
    E("    s_mov_b32 s20, 0")
    E("    s_mov_b32 s30, 0")
    E("    v_bfe_u32 v6, v1, 1, 2")
    E("    v_bfe_u32 v7, v1, 4, 2")
    E("    v_xor_b32 v12, v6, v7")
    E("    v_lshrrev_b32 v13, 3, v1")
    E("    s_lshl_b32 s31, s16, 6")
    E("    v_add_u32 v13, s31, v13")
    E("    v_and_b32 v6, 1, v12")
    E("    v_lshlrev_b32 v14, 5, v6")
    E("    v_and_b32 v6, 1, v1")
    E("    v_lshl_add_u32 v14, v6, 4, v14")
    E("    v_lshrrev_b32 v6, 4, v1")
    E("    v_lshlrev_b32 v15, 7, v6")
    E("    v_and_b32 v7, 15, v1")
    E("    v_lshl_add_u32 v15, v7, 1, v15")
    E("    v_bfe_u32 v7, v1, 2, 2")
    E("    v_lshl_add_u32 v8, v6, 2, v7")
    E("    v_lshlrev_b32 v8, 7, v8")
    E("    v_and_b32 v9, 3, v1")
    E("    v_lshl_add_u32 v8, v9, 3, v8")
    E("    v_lshrrev_b32 v9, 1, v7")
    E("    v_lshl_add_u32 v9, v6, 1, v9")
    E("    v_and_b32 v9, 3, v9")
    E("    v_xor_b32 v10, s18, v9")
    E("    v_lshl_add_u32 v4, v10, 5, v8")
    E("    v_xor_b32 v10, 2, v10")
    E("    v_lshl_add_u32 v5, v10, 5, v8")
    E("    s_waitcnt lgkmcnt(0)")
    E("    s_lshl_b32 s31, s14, 3")
    E("    s_lshl_b32 s32, s17, 1")
    E("    s_add_u32 s31, s31, s32")
    E("    s_lshl_b32 s31, s31, 14")
    E("    s_add_u32 s32, s12, s31")
    E("    s_addc_u32 s33, s13, 0")
    E("    v_lshlrev_b32 v6, 4, v1")
    for i in range(32):
        E(f"    global_load_dwordx4 v[{A0+4*i}:{A0+4*i+3}], v6, s[32:33]")
        E("    s_add_u32 s32, s32, 1024")
        E("    s_addc_u32 s33, s33, 0")
    k1_dma_setup("pro")
    k1_dma_issue(30)
    E("    s_waitcnt vmcnt(0)")
    k1_flush()
    E("L1_loop:")
    E("    s_barrier")
    E("    s_cmp_ge_u32 s20, 4")
    E("    s_cbranch_scc1 L1_nodma")
    E("    s_add_u32 s19, s19, 16")
    k1_dma_setup("loop")
    E("    s_sub_u32 s19, s19, 16")
    E("    s_xor_b32 s34, s30, 0x10000")
    if "NODMA" not in FL: k1_dma_issue(34)
    E("L1_nodma:")
    E("    s_cmp_ge_u32 s19, 8")
    E("    s_cbranch_scc0 L1_main_std")
    E("    s_cmp_ge_u32 s19, 24")
    E("    s_cbranch_scc1 L1_main_std")
    E("    s_sub_u32 s21, s19, 8")
    E("    s_lshl_b32 s21, s21, 1")
    E("    s_add_u32 s21, s21, s18")
    issue_wphi(21, 120)
    k1_main(True)
    if "NOEP" in FL: E("    s_branch L1_next")
    E("    s_sub_u32 s21, s19, 8")
    E("    s_lshl_b32 s21, s21, 1")
    E("    s_add_u32 s21, s21, s18")
    finish_wphi(120, 52)
    for rt in range(2):
        acc = 16 + rt * 8
        E(f"    v_cvt_pk_bf16_f32 v54, v{acc}, v{acc+1}")
        E(f"    v_cvt_pk_bf16_f32 v55, v{acc+2}, v{acc+3}")
        for i in range(4):
            E(f"    v_mov_b32 v{56+i}, 0")
        nop(2)
        E("    v_mfma_f32_16x16x16_bf16 v[56:59], v[54:55], v[52:53], v[56:59]")
        nop(10)
        bf16_round([56, 57, 58, 59], 60)
        for i in range(4):
            E(f"    v_mov_b32 v{64+i}, v{56+i}")
            E(f"    v_mov_b32 v{68+i}, v{56+i}")
        for r in (8, 4, 2, 1):
            nop(1)
            for i in range(4):
                E(f"    v_max_f32_dpp v{72+i}, v{64+i}, v{64+i} row_ror:{r} row_mask:0xf bank_mask:0xf")
                E(f"    v_min_f32_dpp v{76+i}, v{68+i}, v{68+i} row_ror:{r} row_mask:0xf bank_mask:0xf")
            for i in range(4):
                E(f"    v_mov_b32 v{64+i}, v{72+i}")
                E(f"    v_mov_b32 v{68+i}, v{76+i}")
        for i in range(4):
            E(f"    v_sub_f32 v{72+i}, v{56+i}, v{64+i}")
            E(f"    v_sub_f32 v{76+i}, v{68+i}, v{56+i}")
        for i in range(8):
            E(f"    v_mul_f32 v{72+i}, {L2E}, v{72+i}")
        for i in range(8):
            E(f"    v_exp_f32 v{72+i}, v{72+i}")
        nop(1)
        for i in range(8):
            E(f"    v_mov_b32 v{64+i}, v{72+i}")
        for r in (8, 4, 2, 1):
            nop(1)
            for i in range(8):
                E(f"    v_add_f32_dpp v{80+i}, v{64+i}, v{64+i} row_ror:{r} row_mask:0xf bank_mask:0xf")
            for i in range(8):
                E(f"    v_mov_b32 v{64+i}, v{80+i}")
        for i in range(8):
            E(f"    v_rcp_f32 v{64+i}, v{64+i}")
        nop(1)
        for i in range(8):
            E(f"    v_mul_f32 v{72+i}, v{72+i}, v{64+i}")
        E(f"    v_cvt_pk_bf16_f32 v{88+2*rt}, v72, v73")
        E(f"    v_cvt_pk_bf16_f32 v{89+2*rt}, v74, v75")
        E(f"    v_cvt_pk_bf16_f32 v{92+2*rt}, v76, v77")
        E(f"    v_cvt_pk_bf16_f32 v{93+2*rt}, v78, v79")
        E(f"    v_cvt_pk_bf16_f32 v{96+2*rt}, v{acc+4}, v{acc+5}")
        E(f"    v_cvt_pk_bf16_f32 v{97+2*rt}, v{acc+6}, v{acc+7}")
    for i in range(4):
        E(f"    v_mov_b32 v{100+i}, 0x3f803f80")
    for i in range(16):
        E(f"    v_mov_b32 v{104+i}, 0")
    nop(2)
    E("    v_mfma_f32_16x16x32_bf16 v[104:107], v[88:91], v[96:99], v[104:107]")
    E("    v_mfma_f32_16x16x32_bf16 v[108:111], v[92:95], v[96:99], v[108:111]")
    E("    v_mfma_f32_16x16x32_bf16 v[112:115], v[88:91], v[100:103], v[112:115]")
    E("    v_mfma_f32_16x16x32_bf16 v[116:119], v[92:95], v[100:103], v[116:119]")
    nop(12)
    E("    s_lshl_b32 s31, s21, 11")
    E(f"    s_add_u32 s31, s31, {WS_KV}")
    E("    s_add_u32 s32, s12, s31")
    E("    s_addc_u32 s33, s13, 0")
    E("    v_lshlrev_b32 v48, 2, v1")
    for i in range(8):
        if "NOAT" not in FL: E(f"    global_atomic_add_f32 v48, v{104+i}, s[32:33] offset:{i*256}")
    E("    s_add_u32 s32, s32, 65536")
    E("    s_addc_u32 s33, s33, 0")
    for i in range(8):
        if "NOAT" not in FL: E(f"    global_atomic_add_f32 v48, v{112+i}, s[32:33] offset:{i*256}")
    E("    s_branch L1_next")
    E("L1_main_std:")
    E("    s_and_b32 s21, s19, 7")
    E("    s_lshl_b32 s21, s21, 2")
    E("    s_add_u32 s21, s21, s18")
    issue_wphi(21, 120)
    E("    s_add_u32 s21, s21, 2")
    issue_wphi(21, 124)
    k1_main(False)
    if "NOEP" in FL: E("    s_branch L1_next")
    E("    s_cmp_ge_u32 s19, 8")
    E("    s_cbranch_scc1 L1_ep_mlp")
    for tb in range(2):
        E("    s_lshl_b32 s21, s19, 2")
        E(f"    s_add_u32 s21, s21, {2*tb}")
        E("    s_add_u32 s21, s21, s18")
        finish_wphi(120 + 4 * tb, 52)
        E("    s_lshl_b32 s31, s21, 7")
        E("    s_lshl_b32 s34, s14, 3")
        E("    s_add_u32 s31, s31, s34")
        E("    s_lshl_b32 s34, s17, 1")
        E("    s_add_u32 s31, s31, s34")
        E("    s_lshl_b32 s31, s31, 10")
        E(f"    s_add_u32 s31, s31, {WS_PQ}")
        E("    s_add_u32 s32, s12, s31")
        E("    s_addc_u32 s33, s13, 0")
        for rt in range(2):
            acc = 16 + rt * 8 + tb * 4
            E(f"    v_cvt_pk_bf16_f32 v54, v{acc}, v{acc+1}")
            E(f"    v_cvt_pk_bf16_f32 v55, v{acc+2}, v{acc+3}")
            for i in range(4):
                E(f"    v_mov_b32 v{56+i}, 0")
            nop(2)
            E("    v_mfma_f32_16x16x16_bf16 v[56:59], v[52:53], v[54:55], v[56:59]")
            nop(10)
            bf16_round([56, 57, 58, 59], 60)
            E("    v_max_f32 v64, v56, v57")
            E("    v_max3_f32 v64, v64, v58, v59")
            E("    v_min_f32 v65, v56, v57")
            E("    v_min3_f32 v65, v65, v58, v59")
            group_reduce("max_f32", 64, 66)
            group_reduce("min_f32", 65, 66)
            for i in range(4):
                E(f"    v_sub_f32 v{72+i}, v{56+i}, v64")
                E(f"    v_sub_f32 v{76+i}, v65, v{56+i}")
            for i in range(8):
                E(f"    v_mul_f32 v{72+i}, {L2E}, v{72+i}")
            for i in range(8):
                E(f"    v_exp_f32 v{72+i}, v{72+i}")
            nop(1)
            E("    v_add_f32 v64, v72, v73")
            E("    v_add_f32 v64, v64, v74")
            E("    v_add_f32 v64, v64, v75")
            E("    v_add_f32 v65, v76, v77")
            E("    v_add_f32 v65, v65, v78")
            E("    v_add_f32 v65, v65, v79")
            group_reduce("add_f32", 64, 66)
            group_reduce("add_f32", 65, 66)
            E("    v_rcp_f32 v64, v64")
            E("    v_rcp_f32 v65, v65")
            nop(1)
            for i in range(4):
                E(f"    v_mul_f32 v{72+i}, v{72+i}, v64")
                E(f"    v_mul_f32 v{76+i}, v{76+i}, v65")
            E("    v_cvt_pk_bf16_f32 v84, v72, v73")
            E("    v_cvt_pk_bf16_f32 v85, v74, v75")
            E("    v_cvt_pk_bf16_f32 v86, v76, v77")
            E("    v_cvt_pk_bf16_f32 v87, v78, v79")
            E("    v_lshlrev_b32 v48, 4, v1")
            E(f"    global_store_dwordx4 v48, v[84:87], s[32:33] offset:{rt*1024}")
            nop(2)
    E("    s_branch L1_next")
    E("L1_ep_mlp:")
    E("    s_lshl_b32 s31, s14, 3")
    E("    s_lshl_b32 s34, s17, 1")
    E("    s_add_u32 s31, s31, s34")
    E("    s_mul_i32 s31, s31, 56")
    E("    s_add_u32 s31, s31, s19")
    E("    s_sub_u32 s31, s31, 24")
    E("    s_lshl_b32 s31, s31, 10")
    E("    s_lshl_b32 s34, s18, 3")
    E("    s_add_u32 s31, s31, s34")
    E(f"    s_add_u32 s31, s31, {WS_H}")
    E("    s_add_u32 s32, s12, s31")
    E("    s_addc_u32 s33, s13, 0")
    E("    v_lshlrev_b32 v48, 4, v1")
    for rt in range(2):
        acc = 16 + rt * 8
        for i in range(4):
            E(f"    v_max_f32 v{56+i}, 0, v{acc+i}")
        bf16_round([56, 57, 58, 59], 60)
        bf16_round([acc + 4, acc + 5, acc + 6, acc + 7], 60)
        for i in range(4):
            E(f"    v_mul_f32 v{56+i}, v{56+i}, v{acc+4+i}")
        E("    v_cvt_pk_bf16_f32 v84, v56, v57")
        E("    v_cvt_pk_bf16_f32 v85, v58, v59")
        if rt == 0:
            E(f"    global_store_dwordx2 v48, v[84:85], s[32:33]")
        else:
            E(f"    s_add_u32 s32, s32, {56*1024}")
            E("    s_addc_u32 s33, s33, 0")
            E(f"    global_store_dwordx2 v48, v[84:85], s[32:33]")
        nop(2)
    E("L1_next:")
    E("    v_xor_b32 v4, 0x10000, v4")
    E("    v_xor_b32 v5, 0x10000, v5")
    E("    s_xor_b32 s30, s30, 0x10000")
    E("    s_add_u32 s19, s19, 16")
    E("    s_add_u32 s20, s20, 1")
    E("    s_cmp_lt_u32 s20, 5")
    E("    s_cbranch_scc1 L1_loop")
    E("L1_end:")
    E("    s_endpgm")


def gen_k2():
    ACC = 192
    AS = 96
    BS = 144
    kernel_header("gemm2_kernel")
    E("    s_cmp_ge_u32 s2, 256")
    E("    s_cbranch_scc1 L2_end")
    E("    s_load_dwordx2 s[4:5], s[0:1], 0")
    E("    s_load_dwordx2 s[6:7], s[0:1], 24")
    E("    s_load_dwordx2 s[8:9], s[0:1], 56")
    E("    s_load_dwordx2 s[10:11], s[0:1], 64")
    E("    s_load_dwordx2 s[12:13], s[0:1], 80")
    E("    v_and_b32 v1, 63, v0")
    E("    v_lshrrev_b32 v6, 6, v0")
    nop(1)
    E("    v_readfirstlane_b32 s16, v6")
    E("    s_lshr_b32 s14, s2, 6")
    E("    s_lshl_b32 s14, s14, 3")
    E("    s_and_b32 s31, s2, 7")
    E("    s_add_u32 s14, s14, s31")
    E("    s_bfe_u32 s15, s2, 0x30003")
    E("    s_mul_i32 s17, s16, 12288")
    E("    v_bfe_u32 v6, v1, 1, 2")
    E("    v_bfe_u32 v7, v1, 4, 2")
    E("    v_xor_b32 v6, v6, v7")
    E("    v_lshlrev_b32 v2, 5, v6")
    E("    v_lshrrev_b32 v7, 3, v1")
    E("    v_lshl_add_u32 v2, v7, 10, v2")
    E("    v_and_b32 v7, 1, v1")
    E("    v_lshl_add_u32 v2, v7, 4, v2")
    E("    s_lshl_b32 s31, s15, 7")
    E("    v_add_u32 v2, s31, v2")
    E("    v_lshrrev_b32 v6, 4, v1")
    E("    v_bfe_u32 v7, v1, 2, 2")
    E("    v_lshl_add_u32 v12, v6, 2, v7")
    E("    v_lshlrev_b32 v12, 7, v12")
    E("    v_and_b32 v13, 3, v1")
    E("    v_lshl_add_u32 v12, v13, 3, v12")
    E("    v_add_u32 v12, s17, v12")
    E("    v_lshrrev_b32 v13, 1, v7")
    E("    v_lshl_add_u32 v13, v6, 1, v13")
    E("    v_and_b32 v13, 3, v13")
    for T in range(4):
        E(f"    v_xor_b32 v14, {T}, v13")
        E(f"    v_lshl_add_u32 v{8+T}, v14, 5, v12")
    E("    v_lshlrev_b32 v3, 4, v1")
    E("    v_lshlrev_b32 v4, 2, v1")
    for i in range(64):
        E(f"    v_mov_b32 v{ACC+i}, 0")
    E("    s_waitcnt lgkmcnt(0)")

    def dma(base_lo, trow_sreg, slot):
        E(f"    s_lshl_b32 s31, s{trow_sreg}, 15")
        E(f"    s_add_u32 s32, s{base_lo}, s31")
        E(f"    s_addc_u32 s33, s{base_lo+1}, 0")
        E(f"    s_add_u32 s34, s17, {slot*4096}")
        for i in range(4):
            E(f"    s_mov_b32 m0, s34")
            nop(1)
            E(f"    global_load_lds_dwordx4 v2, s[32:33]")
            if i < 3:
                E(f"    s_add_u32 s34, s34, 1024")
                E(f"    s_add_u32 s32, s32, 8192")
                E(f"    s_addc_u32 s33, s33, 0")

    def bread(slot):
        for T in range(4):
            E(f"    ds_read_b64_tr_b16 v[{BS+4*T}:{BS+4*T+1}], v{8+T} offset:{slot*4096}")
            E(f"    ds_read_b64_tr_b16 v[{BS+4*T+2}:{BS+4*T+3}], v{8+T} offset:{slot*4096+2048}")

    def mfmas(aset):
        for rt in range(4):
            a = AS + aset * 16 + rt * 4
            for ct in range(4):
                c = ACC + (rt * 4 + ct) * 4
                b = BS + 4 * ct
                E(f"    v_mfma_f32_16x16x32_bf16 v[{c}:{c+3}], v[{b}:{b+3}], v[{a}:{a+3}], v[{c}:{c+3}]")

    E("    s_mul_i32 s20, s16, 7")
    E("    s_lshl_b32 s22, s14, 2")
    E("    s_mul_i32 s22, s22, 56")
    E("    s_add_u32 s22, s22, s20")
    E("    s_lshl_b32 s22, s22, 10")
    E(f"    s_add_u32 s22, s22, {WS_H}")
    E("    s_add_u32 s24, s12, s22")
    E("    s_addc_u32 s25, s13, 0")

    def hload(n):
        slot = n % 3
        E(f"    s_add_u32 s21, s20, {n}")
        E(f"    s_lshl_b32 s31, s21, 15")
        E(f"    s_add_u32 s32, s8, s31")
        E(f"    s_addc_u32 s33, s9, 0")
        for i in range(4):
            b = 160 + 16 * (n % 2) + 4 * i
            E(f"    global_load_dwordx4 v[{b}:{b+3}], v2, s[32:33]")
            E(f"    s_add_u32 s32, s32, 8192")
            E(f"    s_addc_u32 s33, s33, 0")
        E(f"    s_add_u32 s26, s24, {n*1024}")
        E(f"    s_addc_u32 s27, s25, 0")
        for rt in range(4):
            a = AS + slot * 16 + rt * 4
            E(f"    global_load_dwordx4 v[{a}:{a+3}], v3, s[26:27]")
            if rt < 3:
                E(f"    s_add_u32 s26, s26, {56*1024}")
                E(f"    s_addc_u32 s27, s27, 0")
    for os_ in range(2):
        E(f"    s_lshl_b32 s20, s16, 1")
        if os_:
            E(f"    s_add_u32 s20, s20, 1")
        dma(6, 20, 2)
        for hh in range(2):
            E(f"    s_lshl_b32 s21, s20, 1")
            if hh:
                E(f"    s_add_u32 s21, s21, 1")
            E(f"    s_lshl_b32 s31, s21, 11")
            E(f"    s_add_u32 s31, s31, {WS_KV}")
            E(f"    s_add_u32 s32, s12, s31")
            E(f"    s_addc_u32 s33, s13, 0")
            for i in range(8):
                E(f"    global_load_dword v{20+16*hh+i}, v4, s[32:33] offset:{i*256}")
            E(f"    s_add_u32 s32, s32, 65536")
            E(f"    s_addc_u32 s33, s33, 0")
            for i in range(8):
                E(f"    global_load_dword v{28+16*hh+i}, v4, s[32:33] offset:{i*256}")
            E(f"    s_lshl_b32 s31, s21, 7")
            E(f"    s_lshl_b32 s34, s14, 2")
            E(f"    s_add_u32 s31, s31, s34")
            E(f"    s_lshl_b32 s31, s31, 10")
            E(f"    s_add_u32 s31, s31, {WS_PQ}")
            E(f"    s_add_u32 s32, s12, s31")
            E(f"    s_addc_u32 s33, s13, 0")
            for rt in range(4):
                E(f"    global_load_dwordx4 v[{52+16*hh+4*rt}:{55+16*hh+4*rt}], v3, s[32:33] offset:{rt*1024}")
        E("    s_waitcnt vmcnt(0)")
        for hh in range(2):
            for i in range(4):
                E(f"    v_cvt_pk_bf16_f32 v{84+i}, v{20+16*hh+2*i}, v{21+16*hh+2*i}")
                E(f"    v_cvt_pk_bf16_f32 v{88+i}, v{28+16*hh+2*i}, v{29+16*hh+2*i}")
            for i in range(32):
                E(f"    v_mov_b32 v{160+i}, 0")
            nop(2)
            for rt in range(4):
                p = 52 + 16 * hh + 4 * rt
                E(f"    v_mfma_f32_16x16x32_bf16 v[{160+8*rt}:{163+8*rt}], v[84:87], v[{p}:{p+3}], v[{160+8*rt}:{163+8*rt}]")
                E(f"    v_mfma_f32_16x16x32_bf16 v[{164+8*rt}:{167+8*rt}], v[88:91], v[{p}:{p+3}], v[{164+8*rt}:{167+8*rt}]")
            nop(10)
            for rt in range(4):
                E(f"    v_add_f32 v{164+8*rt}, 0x358637bd, v{164+8*rt}")
                E(f"    v_rcp_f32 v{164+8*rt}, v{164+8*rt}")
            nop(1)
            for rt in range(4):
                for i in range(4):
                    E(f"    v_mul_f32 v{160+8*rt+i}, v{160+8*rt+i}, v{164+8*rt}")
                a = AS + 32 + rt * 4 + hh * 2
                E(f"    v_cvt_pk_bf16_f32 v{a}, v{160+8*rt}, v{161+8*rt}")
                E(f"    v_cvt_pk_bf16_f32 v{a+1}, v{162+8*rt}, v{163+8*rt}")
        bread(2)
        E("    s_waitcnt lgkmcnt(0)")
        mfmas(2)
        nop(2)
    E("    s_mul_i32 s20, s16, 7")
    hload(0)
    hload(1)
    E("    v_add_u32 v19, s17, v3")
    for n in range(7):
        later = min(7, n + 2) - (n + 1)
        E(f"    s_waitcnt vmcnt({8*later})")
        for i in range(4):
            b = 160 + 16 * (n % 2) + 4 * i
            E(f"    ds_write_b128 v19, v[{b}:{b+3}] offset:{(n%3)*4096+i*1024}")
        E("    s_waitcnt lgkmcnt(0)")
        if n + 2 < 7:
            hload(n + 2)
        bread(n % 3)
        E("    s_waitcnt lgkmcnt(0)")
        mfmas(n % 3)
    nop(12)
    E("    s_barrier")
    E("    s_lshl_b32 s31, s16, 14")
    E("    v_add_u32 v5, s31, v3")
    for i in range(16):
        E(f"    ds_write_b128 v5, v[{ACC+4*i}:{ACC+4*i+3}] offset:{i*1024}")
    E("    s_waitcnt lgkmcnt(0)")
    E("    s_barrier")
    E("    s_lshl_b32 s31, s16, 11")
    E("    v_add_u32 v5, s31, v3")
    E("    v_add_u32 v15, 0x10000, v5")
    for tt in range(2):
        for src in range(8):
            E(f"    ds_read_b128 v[{20+4*src}:{23+4*src}], v{5 if src < 4 else 15} offset:{(src&3)*16384+tt*1024}")
        E("    s_waitcnt lgkmcnt(0)")
        for src in range(1, 8):
            for i in range(4):
                E(f"    v_add_f32 v{20+i}, v{20+i}, v{20+4*src+i}")
        E("    s_lshr_b32 s31, s16, 1")
        E("    s_lshl_b32 s31, s31, 4")
        E("    s_lshl_b32 s34, s14, 6")
        E("    s_add_u32 s31, s31, s34")
        E("    v_and_b32 v6, 15, v1")
        E("    v_add_u32 v6, s31, v6")
        E("    v_lshlrev_b32 v6, 10, v6")
        E("    s_and_b32 s31, s16, 1")
        E("    s_lshl_b32 s31, s31, 6")
        E(f"    s_add_u32 s31, s31, {tt*32}")
        E("    s_lshl_b32 s34, s15, 7")
        E("    s_add_u32 s31, s31, s34")
        E("    v_lshrrev_b32 v7, 4, v1")
        E("    v_lshl_add_u32 v6, v7, 3, v6")
        E("    v_add_u32 v6, s31, v6")
        E("    global_load_dwordx2 v[60:61], v6, s[4:5]")
        E("    s_waitcnt vmcnt(0)")
        E("    v_lshlrev_b32 v62, 16, v60")
        E("    v_and_b32 v63, 0xffff0000, v60")
        E("    v_add_f32 v20, v20, v62")
        E("    v_add_f32 v21, v21, v63")
        E("    v_lshlrev_b32 v62, 16, v61")
        E("    v_and_b32 v63, 0xffff0000, v61")
        E("    v_add_f32 v22, v22, v62")
        E("    v_add_f32 v23, v23, v63")
        E("    v_cvt_pk_bf16_f32 v60, v20, v21")
        E("    v_cvt_pk_bf16_f32 v61, v22, v23")
        E("    global_store_dwordx2 v6, v[60:61], s[10:11]")
    E("L2_end:")
    E("    s_endpgm")


def descriptor(name, vgpr, sgpr=102):
    acc = (vgpr + 3) // 4 * 4
    E(f".amdhsa_kernel {name}")
    E(f"  .amdhsa_next_free_vgpr {vgpr}")
    E(f"  .amdhsa_next_free_sgpr {sgpr}")
    E(f"  .amdhsa_accum_offset {acc}")
    E("  .amdhsa_group_segment_fixed_size 0")
    E("  .amdhsa_kernarg_size 88")
    E("  .amdhsa_user_sgpr_count 2")
    E("  .amdhsa_user_sgpr_kernarg_segment_ptr 1")
    E("  .amdhsa_system_sgpr_workgroup_id_x 1")
    E(".end_amdhsa_kernel")


def main():
    E("; generated by gen.py")
    E("; @launch kernel=ln_kernel grid=(512,1,1) block=(256,1,1) lds=0")
    E("; @launch kernel=gemm1_kernel grid=(256,1,1) block=(512,1,1) lds=131072")
    E("; @launch kernel=gemm2_kernel grid=(256,1,1) block=(512,1,1) lds=131072")
    E('.amdgcn_target "amdgcn-amd-amdhsa--gfx950"')
    E(".text")
    gen_k0()
    gen_k1()
    gen_k2()
    E('.section .rodata,"a"')
    E(".p2align 6")
    descriptor("ln_kernel", 32, 32)
    descriptor("gemm1_kernel", 256)
    descriptor("gemm2_kernel", 256)
    open(OUT, "w").write("\n".join(lines) + "\n")


main()
```

```python
import sys, os
FL=os.environ.get("FL","").split(",")

NAME = "parallel_sum__linear_kernel_hedgehog__glu_gated_reglu__prompt"
OUT = f"cdna_kernels/{NAME}.s"

WS_XN = 0
WS_H = 2 << 20
WS_PQ = 9 << 20
WS_KV = 13 << 20
WS_Z = (13 << 20) + 65536

L2E = "0x3fb8aa3b"

lines = []


def E(s=""):
    lines.append(s)


def nop(n):
    while n > 0:
        k = min(n, 16)
        E(f"    s_nop {k-1}")
        n -= k


def wave_reduce(op, v, t):
    for r in (8, 4, 2, 1):
        nop(2)
        E(f"    v_{op}_dpp v{t}, v{v}, v{v} row_ror:{r} row_mask:0xf bank_mask:0xf")
        E(f"    v_mov_b32 v{v}, v{t}")
    group_reduce(op, v, t)


def group_reduce(op, v, t):
    E(f"    v_mov_b32 v{t}, v{v}")
    nop(2)
    E(f"    v_permlane16_swap_b32 v{v}, v{t}")
    nop(1)
    E(f"    v_{op} v{v}, v{v}, v{t}")
    E(f"    v_mov_b32 v{t}, v{v}")
    nop(2)
    E(f"    v_permlane32_swap_b32 v{v}, v{t}")
    nop(1)
    E(f"    v_{op} v{v}, v{v}, v{t}")


def kernel_header(name):
    E(f".globl {name}")
    E(".p2align 8")
    E(f".type {name},@function")
    E(f"{name}:")


def gen_k0():
    kernel_header("ln_kernel")
    E("    s_cmp_ge_u32 s2, 512")
    E("    s_cbranch_scc1 L0_end")
    E("    s_load_dwordx2 s[4:5], s[0:1], 0")
    E("    s_load_dwordx2 s[6:7], s[0:1], 80")
    E("    v_and_b32 v1, 63, v0")
    E("    v_lshrrev_b32 v2, 6, v0")
    E("    s_lshl_b32 s3, s2, 2")
    E("    v_add_u32 v3, s3, v2")
    E("    v_lshlrev_b32 v4, 10, v3")
    E("    v_lshl_add_u32 v4, v1, 4, v4")
    E("    s_waitcnt lgkmcnt(0)")
    E("    global_load_dwordx4 v[8:11], v4, s[4:5]")
    E("    s_cmp_ge_u32 s2, 32")
    E("    s_cbranch_scc1 L0_nozero")
    E("    v_lshlrev_b32 v5, 4, v0")
    E("    s_lshl_b32 s8, s2, 12")
    E(f"    s_add_u32 s8, s8, {WS_KV}")
    E("    v_add_u32 v5, s8, v5")
    for i in range(12, 16):
        E(f"    v_mov_b32 v{i}, 0")
    E("    global_store_dwordx4 v5, v[12:15], s[6:7]")
    E("L0_nozero:")
    E("    s_waitcnt vmcnt(0)")
    for i in range(4):
        E(f"    v_lshlrev_b32 v{16+2*i}, 16, v{8+i}")
        E(f"    v_and_b32 v{17+2*i}, 0xffff0000, v{8+i}")
    E("    v_add_f32 v24, v16, v17")
    for i in range(18, 24):
        E(f"    v_add_f32 v24, v24, v{i}")
    wave_reduce("add_f32", 24, 25)
    E("    v_mul_f32 v24, 0x3b000000, v24")
    E("    v_sub_f32 v26, v16, v24")
    E("    v_mul_f32 v27, v26, v26")
    for i in range(17, 24):
        E(f"    v_sub_f32 v26, v{i}, v24")
        E(f"    v_fmac_f32 v27, v26, v26")
    wave_reduce("add_f32", 27, 25)
    E("    v_mul_f32 v27, 0x3b000000, v27")
    E("    v_cvt_pk_bf16_f32 v28, v24, v27")
    E("    v_lshlrev_b32 v24, 16, v28")
    E("    v_and_b32 v27, 0xffff0000, v28")
    E("    v_add_f32 v27, 0x3727c5ac, v27")
    E("    v_cvt_pk_bf16_f32 v28, v27, v27")
    E("    v_and_b32 v27, 0xffff0000, v28")
    E("    v_sqrt_f32 v27, v27")
    nop(1)
    E("    v_cvt_pk_bf16_f32 v28, v27, v27")
    E("    v_and_b32 v27, 0xffff0000, v28")
    E("    v_rcp_f32 v27, v27")
    nop(1)
    for i in range(4):
        a, b = 16 + 2 * i, 17 + 2 * i
        E(f"    v_sub_f32 v{a}, v{a}, v24")
        E(f"    v_sub_f32 v{b}, v{b}, v24")
        E(f"    v_cvt_pk_bf16_f32 v28, v{a}, v{b}")
        E(f"    v_lshlrev_b32 v{a}, 16, v28")
        E(f"    v_and_b32 v{b}, 0xffff0000, v28")
        E(f"    v_mul_f32 v{a}, v{a}, v27")
        E(f"    v_mul_f32 v{b}, v{b}, v27")
        E(f"    v_cvt_pk_bf16_f32 v{8+i}, v{a}, v{b}")
    E("    v_lshrrev_b32 v12, 4, v3")
    E("    v_lshlrev_b32 v12, 4, v12")
    E("    v_lshrrev_b32 v13, 2, v1")
    E("    v_add_u32 v12, v12, v13")
    E("    v_lshlrev_b32 v12, 6, v12")
    E("    v_and_b32 v13, 15, v3")
    E("    v_add_u32 v12, v12, v13")
    E("    v_and_b32 v13, 1, v1")
    E("    v_lshlrev_b32 v13, 5, v13")
    E("    v_add_u32 v12, v12, v13")
    E("    v_lshlrev_b32 v12, 4, v12")
    E("    v_bfe_u32 v13, v1, 1, 1")
    E("    v_lshl_add_u32 v12, v13, 3, v12")
    if WS_XN:
        E(f"    v_add_u32 v12, {WS_XN}, v12")
    E("    global_store_dwordx2 v12, v[8:9], s[6:7]")
    E("    global_store_dwordx2 v12, v[10:11], s[6:7] offset:256")
    E("L0_end:")
    E("    s_endpgm")


A0 = 128


def k1_dma_setup(tag):
    E(f"    s_cmp_ge_u32 s19, 24")
    E(f"    s_cbranch_scc1 L1_dma_mlp_{tag}")
    E(f"    s_cmp_ge_u32 s19, 8")
    E(f"    s_cbranch_scc1 L1_dma_kv_{tag}")
    E(f"    s_lshl_b32 s31, s19, 7")
    E(f"    s_add_u32 s24, s4, s31")
    E(f"    s_addc_u32 s25, s5, 0")
    E(f"    s_add_u32 s26, s24, 64")
    E(f"    s_addc_u32 s27, s25, 0")
    E(f"    s_movk_i32 s28, 3072")
    E(f"    s_branch L1_dma_go_{tag}")
    E(f"L1_dma_kv_{tag}:")
    E(f"    s_sub_u32 s31, s19, 8")
    E(f"    s_lshl_b32 s31, s31, 6")
    E(f"    s_add_u32 s31, s31, 1024")
    E(f"    s_add_u32 s24, s4, s31")
    E(f"    s_addc_u32 s25, s5, 0")
    E(f"    s_add_u32 s26, s24, 1024")
    E(f"    s_addc_u32 s27, s25, 0")
    E(f"    s_movk_i32 s28, 3072")
    E(f"    s_branch L1_dma_go_{tag}")
    E(f"L1_dma_mlp_{tag}:")
    E(f"    s_sub_u32 s31, s19, 24")
    E(f"    s_lshl_b32 s31, s31, 6")
    E(f"    s_add_u32 s24, s8, s31")
    E(f"    s_addc_u32 s25, s9, 0")
    E(f"    s_add_u32 s26, s10, s31")
    E(f"    s_addc_u32 s27, s11, 0")
    E(f"    s_movk_i32 s28, 3584")
    E(f"L1_dma_go_{tag}:")
    E(f"    s_lshl_b32 s29, s28, 3")
    E(f"    v_cmp_le_u32 vcc, 2, v12")
    E(f"    v_mov_b32 v6, s24")
    E(f"    v_mov_b32 v7, s26")
    E(f"    v_cndmask_b32 v2, v6, v7, vcc")
    E(f"    v_mov_b32 v6, s25")
    E(f"    v_mov_b32 v7, s27")
    E(f"    v_cndmask_b32 v3, v6, v7, vcc")
    E(f"    v_mul_lo_u32 v6, v13, s28")
    E(f"    v_add_u32 v6, v6, v14")
    E(f"    v_add_co_u32 v2, vcc, v2, v6")
    E(f"    v_addc_co_u32 v3, vcc, 0, v3, vcc")


def k1_dma_issue(bufreg):
    E(f"    s_lshl_b32 s31, s16, 13")
    E(f"    s_add_u32 s31, s31, s{bufreg}")
    E(f"    v_lshlrev_b32 v11, 4, v1")
    E(f"    v_add_u32 v11, s31, v11")
    for i in range(8):
        E(f"    global_load_dwordx4 v[{48+4*i}:{51+4*i}], v[2:3], off")
        if i < 7:
            E(f"    v_add_co_u32 v2, vcc, s29, v2")
            E(f"    v_addc_co_u32 v3, vcc, 0, v3, vcc")


def k1_flush():
    for i in range(8):
        E(f"    ds_write_b128 v11, v[{48+4*i}:{51+4*i}] offset:{i*1024}")
    E("    s_waitcnt lgkmcnt(0)")


def k1_main(kv):
    def reads(s, st):
        b = 32 + 8 * st
        E(f"    ds_read_b64_tr_b16 v[{b}:{b+1}], v4 offset:{s*4096}")
        E(f"    ds_read_b64_tr_b16 v[{b+2}:{b+3}], v4 offset:{s*4096+2048}")
        E(f"    ds_read_b64_tr_b16 v[{b+4}:{b+5}], v5 offset:{s*4096}")
        E(f"    ds_read_b64_tr_b16 v[{b+6}:{b+7}], v5 offset:{s*4096+2048}")
    for i in range(16, 32):
        E(f"    v_mov_b32 v{i}, 0")
    reads(0, 0)
    for s in range(16):
        st = s & 1
        if s < 15:
            reads(s + 1, st ^ 1)
            E("    s_waitcnt lgkmcnt(4)")
        else:
            E("    s_waitcnt lgkmcnt(0)")
        b = 32 + 8 * st
        for rt in range(0 if "NOMFMA" in FL else 2):
            xa = A0 + rt * 64 + s * 4
            acc = 16 + rt * 8
            E(f"    v_mfma_f32_16x16x32_bf16 v[{acc}:{acc+3}], v[{b}:{b+3}], v[{xa}:{xa+3}], v[{acc}:{acc+3}]")
            if kv:
                E(f"    v_mfma_f32_16x16x32_bf16 v[{acc+4}:{acc+7}], v[{xa}:{xa+3}], v[{b+4}:{b+7}], v[{acc+4}:{acc+7}]")
            else:
                E(f"    v_mfma_f32_16x16x32_bf16 v[{acc+4}:{acc+7}], v[{b+4}:{b+7}], v[{xa}:{xa+3}], v[{acc+4}:{acc+7}]")
    E("    s_waitcnt vmcnt(0)")
    E("    s_cmp_ge_u32 s20, 4")
    E(f"    s_cbranch_scc1 L1_nofl_{int(kv)}")
    k1_flush()
    E(f"L1_nofl_{int(kv)}:")
    nop(10)


def issue_wphi(hs, raw):
    E(f"    s_lshl_b32 s31, s{hs}, 9")
    E(f"    s_add_u32 s32, s6, s31")
    E(f"    s_addc_u32 s33, s7, 0")
    for j in range(4):
        E(f"    global_load_ushort v{raw+j}, v15, s[32:33] offset:{j*32}")


def finish_wphi(raw, dst):
    E(f"    v_lshl_or_b32 v{dst}, v{raw+1}, 16, v{raw}")
    E(f"    v_lshl_or_b32 v{dst+1}, v{raw+3}, 16, v{raw+2}")


def load_wphi(hs, dst):
    E(f"    s_lshl_b32 s31, s{hs}, 9")
    E(f"    s_add_u32 s32, s6, s31")
    E(f"    s_addc_u32 s33, s7, 0")
    for j in range(4):
        E(f"    global_load_ushort v{48+j}, v15, s[32:33] offset:{j*32}")
    E("    s_waitcnt vmcnt(0)")
    E(f"    v_lshl_or_b32 v{dst}, v49, 16, v48")
    E(f"    v_lshl_or_b32 v{dst+1}, v51, 16, v50")


def bf16_round(regs, t):
    a, b, c, d = regs
    E(f"    v_cvt_pk_bf16_f32 v{t}, v{a}, v{b}")
    E(f"    v_cvt_pk_bf16_f32 v{t+1}, v{c}, v{d}")
    E(f"    v_lshlrev_b32 v{a}, 16, v{t}")
    E(f"    v_and_b32 v{b}, 0xffff0000, v{t}")
    E(f"    v_lshlrev_b32 v{c}, 16, v{t+1}")
    E(f"    v_and_b32 v{d}, 0xffff0000, v{t+1}")


def softmax_pm(p, ep, em, reduce_fn):
    pass


def gen_k1():
    kernel_header("gemm1_kernel")
    E("    s_cmp_ge_u32 s2, 256")
    E("    s_cbranch_scc1 L1_end")
    E("    s_load_dwordx4 s[4:7], s[0:1], 8")
    E("    s_load_dwordx4 s[8:11], s[0:1], 40")
    E("    s_load_dwordx2 s[12:13], s[0:1], 80")
    E("    v_and_b32 v1, 63, v0")
    E("    v_lshrrev_b32 v6, 6, v0")
    nop(1)
    E("    v_readfirstlane_b32 s16, v6")
    E("    s_lshr_b32 s14, s2, 4")
    E("    s_and_b32 s15, s2, 15")
    E("    s_and_b32 s17, s16, 3")
    E("    s_lshr_b32 s18, s16, 2")
    E("    s_mov_b32 s19, s15")
    E("    s_mov_b32 s20, 0")
    E("    s_mov_b32 s30, 0")
    E("    v_bfe_u32 v6, v1, 1, 2")
    E("    v_bfe_u32 v7, v1, 4, 2")
    E("    v_xor_b32 v12, v6, v7")
    E("    v_lshrrev_b32 v13, 3, v1")
    E("    s_lshl_b32 s31, s16, 6")
    E("    v_add_u32 v13, s31, v13")
    E("    v_and_b32 v6, 1, v12")
    E("    v_lshlrev_b32 v14, 5, v6")
    E("    v_and_b32 v6, 1, v1")
    E("    v_lshl_add_u32 v14, v6, 4, v14")
    E("    v_lshrrev_b32 v6, 4, v1")
    E("    v_lshlrev_b32 v15, 7, v6")
    E("    v_and_b32 v7, 15, v1")
    E("    v_lshl_add_u32 v15, v7, 1, v15")
    E("    v_bfe_u32 v7, v1, 2, 2")
    E("    v_lshl_add_u32 v8, v6, 2, v7")
    E("    v_lshlrev_b32 v8, 7, v8")
    E("    v_and_b32 v9, 3, v1")
    E("    v_lshl_add_u32 v8, v9, 3, v8")
    E("    v_lshrrev_b32 v9, 1, v7")
    E("    v_lshl_add_u32 v9, v6, 1, v9")
    E("    v_and_b32 v9, 3, v9")
    E("    v_xor_b32 v10, s18, v9")
    E("    v_lshl_add_u32 v4, v10, 5, v8")
    E("    v_xor_b32 v10, 2, v10")
    E("    v_lshl_add_u32 v5, v10, 5, v8")
    E("    s_waitcnt lgkmcnt(0)")
    E("    s_lshl_b32 s31, s14, 3")
    E("    s_lshl_b32 s32, s17, 1")
    E("    s_add_u32 s31, s31, s32")
    E("    s_lshl_b32 s31, s31, 14")
    E("    s_add_u32 s32, s12, s31")
    E("    s_addc_u32 s33, s13, 0")
    E("    v_lshlrev_b32 v6, 4, v1")
    for i in range(32):
        E(f"    global_load_dwordx4 v[{A0+4*i}:{A0+4*i+3}], v6, s[32:33]")
        E("    s_add_u32 s32, s32, 1024")
        E("    s_addc_u32 s33, s33, 0")
    k1_dma_setup("pro")
    k1_dma_issue(30)
    E("    v_lshlrev_b32 v6, 4, v0")
    E("    v_add_u32 v6, 131072, v6")
    for i in range(4):
        E(f"    v_mov_b32 v{84+i}, 0")
    E("    ds_write_b128 v6, v[84:87]")
    E("    s_waitcnt vmcnt(0)")
    k1_flush()
    E("L1_loop:")
    E("    s_barrier")
    E("    s_cmp_ge_u32 s20, 4")
    E("    s_cbranch_scc1 L1_nodma")
    E("    s_add_u32 s19, s19, 16")
    k1_dma_setup("loop")
    E("    s_sub_u32 s19, s19, 16")
    E("    s_xor_b32 s34, s30, 0x10000")
    if "NODMA" not in FL: k1_dma_issue(34)
    E("L1_nodma:")
    E("    s_cmp_ge_u32 s19, 8")
    E("    s_cbranch_scc0 L1_main_std")
    E("    s_cmp_ge_u32 s19, 24")
    E("    s_cbranch_scc1 L1_main_std")
    E("    s_sub_u32 s21, s19, 8")
    E("    s_lshl_b32 s21, s21, 1")
    E("    s_add_u32 s21, s21, s18")
    issue_wphi(21, 120)
    k1_main(True)
    if "NOEP" in FL: E("    s_branch L1_next")
    E("    s_sub_u32 s21, s19, 8")
    E("    s_lshl_b32 s21, s21, 1")
    E("    s_add_u32 s21, s21, s18")
    finish_wphi(120, 52)
    for rt in range(2):
        acc = 16 + rt * 8
        E(f"    v_cvt_pk_bf16_f32 v54, v{acc}, v{acc+1}")
        E(f"    v_cvt_pk_bf16_f32 v55, v{acc+2}, v{acc+3}")
        for i in range(4):
            E(f"    v_mov_b32 v{56+i}, 0")
        nop(2)
        E("    v_mfma_f32_16x16x16_bf16 v[56:59], v[54:55], v[52:53], v[56:59]")
        nop(10)
        bf16_round([56, 57, 58, 59], 60)
        for i in range(4):
            E(f"    v_mov_b32 v{64+i}, v{56+i}")
            E(f"    v_mov_b32 v{68+i}, v{56+i}")
        for r in (8, 4, 2, 1):
            nop(1)
            for i in range(4):
                E(f"    v_max_f32_dpp v{72+i}, v{64+i}, v{64+i} row_ror:{r} row_mask:0xf bank_mask:0xf")
                E(f"    v_min_f32_dpp v{76+i}, v{68+i}, v{68+i} row_ror:{r} row_mask:0xf bank_mask:0xf")
            for i in range(4):
                E(f"    v_mov_b32 v{64+i}, v{72+i}")
                E(f"    v_mov_b32 v{68+i}, v{76+i}")
        for i in range(4):
            E(f"    v_sub_f32 v{72+i}, v{56+i}, v{64+i}")
            E(f"    v_sub_f32 v{76+i}, v{68+i}, v{56+i}")
        for i in range(8):
            E(f"    v_mul_f32 v{72+i}, {L2E}, v{72+i}")
        for i in range(8):
            E(f"    v_exp_f32 v{72+i}, v{72+i}")
        nop(1)
        for i in range(8):
            E(f"    v_mov_b32 v{64+i}, v{72+i}")
        for r in (8, 4, 2, 1):
            nop(1)
            for i in range(8):
                E(f"    v_add_f32_dpp v{80+i}, v{64+i}, v{64+i} row_ror:{r} row_mask:0xf bank_mask:0xf")
            for i in range(8):
                E(f"    v_mov_b32 v{64+i}, v{80+i}")
        for i in range(8):
            E(f"    v_rcp_f32 v{64+i}, v{64+i}")
        nop(1)
        for i in range(8):
            E(f"    v_mul_f32 v{72+i}, v{72+i}, v{64+i}")
        E(f"    v_cvt_pk_bf16_f32 v{88+2*rt}, v72, v73")
        E(f"    v_cvt_pk_bf16_f32 v{89+2*rt}, v74, v75")
        E(f"    v_cvt_pk_bf16_f32 v{92+2*rt}, v76, v77")
        E(f"    v_cvt_pk_bf16_f32 v{93+2*rt}, v78, v79")
        E(f"    v_cvt_pk_bf16_f32 v{96+2*rt}, v{acc+4}, v{acc+5}")
        E(f"    v_cvt_pk_bf16_f32 v{97+2*rt}, v{acc+6}, v{acc+7}")
    for i in range(4):
        E(f"    v_mov_b32 v{100+i}, 0x3f803f80")
    for i in range(16):
        E(f"    v_mov_b32 v{104+i}, 0")
    nop(2)
    E("    v_mfma_f32_16x16x32_bf16 v[104:107], v[88:91], v[96:99], v[104:107]")
    E("    v_mfma_f32_16x16x32_bf16 v[108:111], v[92:95], v[96:99], v[108:111]")
    E("    v_mfma_f32_16x16x32_bf16 v[112:115], v[88:91], v[100:103], v[112:115]")
    E("    v_mfma_f32_16x16x32_bf16 v[116:119], v[92:95], v[100:103], v[116:119]")
    nop(12)
    E("    v_lshlrev_b32 v48, 2, v1")
    E("    s_lshl_b32 s31, s18, 12")
    E("    s_add_u32 s31, s31, 131072")
    E("    v_add_u32 v49, s31, v48")
    for i in range(16):
        E(f"    ds_add_f32 v49, v{104+i} offset:{i*256}")
    E("    s_waitcnt lgkmcnt(0)")
    E("    s_barrier")
    E("    s_cmp_lg_u32 s17, 0")
    E("    s_cbranch_scc1 L1_next")
    for i in range(16):
        E(f"    ds_read_b32 v{104+i}, v49 offset:{i*256}")
    E("    v_mov_b32 v50, 0")
    E("    s_waitcnt lgkmcnt(0)")
    for i in range(16):
        E(f"    ds_write_b32 v49, v50 offset:{i*256}")
    E("    s_lshl_b32 s31, s21, 11")
    E(f"    s_add_u32 s31, s31, {WS_KV}")
    E("    s_add_u32 s32, s12, s31")
    E("    s_addc_u32 s33, s13, 0")
    for i in range(8):
        E(f"    global_atomic_add_f32 v48, v{104+i}, s[32:33] offset:{i*256}")
    E("    s_add_u32 s32, s32, 65536")
    E("    s_addc_u32 s33, s33, 0")
    for i in range(8):
        E(f"    global_atomic_add_f32 v48, v{112+i}, s[32:33] offset:{i*256}")
    E("    s_waitcnt lgkmcnt(0)")
    E("    s_branch L1_next")
    E("L1_main_std:")
    E("    s_and_b32 s21, s19, 7")
    E("    s_lshl_b32 s21, s21, 2")
    E("    s_add_u32 s21, s21, s18")
    issue_wphi(21, 120)
    E("    s_add_u32 s21, s21, 2")
    issue_wphi(21, 124)
    k1_main(False)
    if "NOEP" in FL: E("    s_branch L1_next")
    E("    s_cmp_ge_u32 s19, 8")
    E("    s_cbranch_scc1 L1_ep_mlp")
    for tb in range(2):
        E("    s_lshl_b32 s21, s19, 2")
        E(f"    s_add_u32 s21, s21, {2*tb}")
        E("    s_add_u32 s21, s21, s18")
        finish_wphi(120 + 4 * tb, 52)
        E("    s_lshl_b32 s31, s21, 7")
        E("    s_lshl_b32 s34, s14, 3")
        E("    s_add_u32 s31, s31, s34")
        E("    s_lshl_b32 s34, s17, 1")
        E("    s_add_u32 s31, s31, s34")
        E("    s_lshl_b32 s31, s31, 10")
        E(f"    s_add_u32 s31, s31, {WS_PQ}")
        E("    s_add_u32 s32, s12, s31")
        E("    s_addc_u32 s33, s13, 0")
        for rt in range(2):
            acc = 16 + rt * 8 + tb * 4
            E(f"    v_cvt_pk_bf16_f32 v54, v{acc}, v{acc+1}")
            E(f"    v_cvt_pk_bf16_f32 v55, v{acc+2}, v{acc+3}")
            for i in range(4):
                E(f"    v_mov_b32 v{56+i}, 0")
            nop(2)
            E("    v_mfma_f32_16x16x16_bf16 v[56:59], v[52:53], v[54:55], v[56:59]")
            nop(10)
            bf16_round([56, 57, 58, 59], 60)
            E("    v_max_f32 v64, v56, v57")
            E("    v_max3_f32 v64, v64, v58, v59")
            E("    v_min_f32 v65, v56, v57")
            E("    v_min3_f32 v65, v65, v58, v59")
            group_reduce("max_f32", 64, 66)
            group_reduce("min_f32", 65, 66)
            for i in range(4):
                E(f"    v_sub_f32 v{72+i}, v{56+i}, v64")
                E(f"    v_sub_f32 v{76+i}, v65, v{56+i}")
            for i in range(8):
                E(f"    v_mul_f32 v{72+i}, {L2E}, v{72+i}")
            for i in range(8):
                E(f"    v_exp_f32 v{72+i}, v{72+i}")
            nop(1)
            E("    v_add_f32 v64, v72, v73")
            E("    v_add_f32 v64, v64, v74")
            E("    v_add_f32 v64, v64, v75")
            E("    v_add_f32 v65, v76, v77")
            E("    v_add_f32 v65, v65, v78")
            E("    v_add_f32 v65, v65, v79")
            group_reduce("add_f32", 64, 66)
            group_reduce("add_f32", 65, 66)
            E("    v_rcp_f32 v64, v64")
            E("    v_rcp_f32 v65, v65")
            nop(1)
            for i in range(4):
                E(f"    v_mul_f32 v{72+i}, v{72+i}, v64")
                E(f"    v_mul_f32 v{76+i}, v{76+i}, v65")
            E("    v_cvt_pk_bf16_f32 v84, v72, v73")
            E("    v_cvt_pk_bf16_f32 v85, v74, v75")
            E("    v_cvt_pk_bf16_f32 v86, v76, v77")
            E("    v_cvt_pk_bf16_f32 v87, v78, v79")
            E("    v_lshlrev_b32 v48, 4, v1")
            E(f"    global_store_dwordx4 v48, v[84:87], s[32:33] offset:{rt*1024}")
            nop(2)
    E("    s_branch L1_next")
    E("L1_ep_mlp:")
    E("    s_lshl_b32 s31, s14, 3")
    E("    s_lshl_b32 s34, s17, 1")
    E("    s_add_u32 s31, s31, s34")
    E("    s_mul_i32 s31, s31, 56")
    E("    s_add_u32 s31, s31, s19")
    E("    s_sub_u32 s31, s31, 24")
    E("    s_lshl_b32 s31, s31, 10")
    E("    s_lshl_b32 s34, s18, 3")
    E("    s_add_u32 s31, s31, s34")
    E(f"    s_add_u32 s31, s31, {WS_H}")
    E("    s_add_u32 s32, s12, s31")
    E("    s_addc_u32 s33, s13, 0")
    E("    v_lshlrev_b32 v48, 4, v1")
    for rt in range(2):
        acc = 16 + rt * 8
        for i in range(4):
            E(f"    v_max_f32 v{56+i}, 0, v{acc+i}")
        bf16_round([56, 57, 58, 59], 60)
        bf16_round([acc + 4, acc + 5, acc + 6, acc + 7], 60)
        for i in range(4):
            E(f"    v_mul_f32 v{56+i}, v{56+i}, v{acc+4+i}")
        E("    v_cvt_pk_bf16_f32 v84, v56, v57")
        E("    v_cvt_pk_bf16_f32 v85, v58, v59")
        if rt == 0:
            E(f"    global_store_dwordx2 v48, v[84:85], s[32:33]")
        else:
            E(f"    s_add_u32 s32, s32, {56*1024}")
            E("    s_addc_u32 s33, s33, 0")
            E(f"    global_store_dwordx2 v48, v[84:85], s[32:33]")
        nop(2)
    E("L1_next:")
    E("    v_xor_b32 v4, 0x10000, v4")
    E("    v_xor_b32 v5, 0x10000, v5")
    E("    s_xor_b32 s30, s30, 0x10000")
    E("    s_add_u32 s19, s19, 16")
    E("    s_add_u32 s20, s20, 1")
    E("    s_cmp_lt_u32 s20, 5")
    E("    s_cbranch_scc1 L1_loop")
    E("L1_end:")
    E("    s_endpgm")


def gen_k2():
    ACC = 192
    AS = 96
    BS = 144
    kernel_header("gemm2_kernel")
    E("    s_cmp_ge_u32 s2, 256")
    E("    s_cbranch_scc1 L2_end")
    E("    s_load_dwordx2 s[4:5], s[0:1], 0")
    E("    s_load_dwordx2 s[6:7], s[0:1], 24")
    E("    s_load_dwordx2 s[8:9], s[0:1], 56")
    E("    s_load_dwordx2 s[10:11], s[0:1], 64")
    E("    s_load_dwordx2 s[12:13], s[0:1], 80")
    E("    v_and_b32 v1, 63, v0")
    E("    v_lshrrev_b32 v6, 6, v0")
    nop(1)
    E("    v_readfirstlane_b32 s16, v6")
    E("    s_lshr_b32 s14, s2, 6")
    E("    s_lshl_b32 s14, s14, 3")
    E("    s_and_b32 s31, s2, 7")
    E("    s_add_u32 s14, s14, s31")
    E("    s_bfe_u32 s15, s2, 0x30003")
    E("    s_mul_i32 s17, s16, 12288")
    E("    v_bfe_u32 v6, v1, 1, 2")
    E("    v_bfe_u32 v7, v1, 4, 2")
    E("    v_xor_b32 v6, v6, v7")
    E("    v_lshlrev_b32 v2, 5, v6")
    E("    v_lshrrev_b32 v7, 3, v1")
    E("    v_lshl_add_u32 v2, v7, 10, v2")
    E("    v_and_b32 v7, 1, v1")
    E("    v_lshl_add_u32 v2, v7, 4, v2")
    E("    s_lshl_b32 s31, s15, 7")
    E("    v_add_u32 v2, s31, v2")
    E("    v_lshrrev_b32 v6, 4, v1")
    E("    v_bfe_u32 v7, v1, 2, 2")
    E("    v_lshl_add_u32 v12, v6, 2, v7")
    E("    v_lshlrev_b32 v12, 7, v12")
    E("    v_and_b32 v13, 3, v1")
    E("    v_lshl_add_u32 v12, v13, 3, v12")
    E("    v_add_u32 v12, s17, v12")
    E("    v_lshrrev_b32 v13, 1, v7")
    E("    v_lshl_add_u32 v13, v6, 1, v13")
    E("    v_and_b32 v13, 3, v13")
    for T in range(4):
        E(f"    v_xor_b32 v14, {T}, v13")
        E(f"    v_lshl_add_u32 v{8+T}, v14, 5, v12")
    E("    v_lshlrev_b32 v3, 4, v1")
    E("    v_lshlrev_b32 v4, 2, v1")
    for i in range(64):
        E(f"    v_mov_b32 v{ACC+i}, 0")
    E("    s_waitcnt lgkmcnt(0)")

    def dma(base_lo, trow_sreg, slot):
        E(f"    s_lshl_b32 s31, s{trow_sreg}, 15")
        E(f"    s_add_u32 s32, s{base_lo}, s31")
        E(f"    s_addc_u32 s33, s{base_lo+1}, 0")
        E(f"    s_add_u32 s34, s17, {slot*4096}")
        for i in range(4):
            E(f"    s_mov_b32 m0, s34")
            nop(1)
            E(f"    global_load_lds_dwordx4 v2, s[32:33]")
            if i < 3:
                E(f"    s_add_u32 s34, s34, 1024")
                E(f"    s_add_u32 s32, s32, 8192")
                E(f"    s_addc_u32 s33, s33, 0")

    def bread(slot):
        for T in range(4):
            E(f"    ds_read_b64_tr_b16 v[{BS+4*T}:{BS+4*T+1}], v{8+T} offset:{slot*4096}")
            E(f"    ds_read_b64_tr_b16 v[{BS+4*T+2}:{BS+4*T+3}], v{8+T} offset:{slot*4096+2048}")

    def mfmas(aset):
        for rt in range(4):
            a = AS + aset * 16 + rt * 4
            for ct in range(4):
                c = ACC + (rt * 4 + ct) * 4
                b = BS + 4 * ct
                E(f"    v_mfma_f32_16x16x32_bf16 v[{c}:{c+3}], v[{b}:{b+3}], v[{a}:{a+3}], v[{c}:{c+3}]")

    E("    s_mul_i32 s20, s16, 7")
    E("    s_lshl_b32 s22, s14, 2")
    E("    s_mul_i32 s22, s22, 56")
    E("    s_add_u32 s22, s22, s20")
    E("    s_lshl_b32 s22, s22, 10")
    E(f"    s_add_u32 s22, s22, {WS_H}")
    E("    s_add_u32 s24, s12, s22")
    E("    s_addc_u32 s25, s13, 0")

    def hload(n):
        slot = n % 3
        E(f"    s_add_u32 s21, s20, {n}")
        E(f"    s_lshl_b32 s31, s21, 15")
        E(f"    s_add_u32 s32, s8, s31")
        E(f"    s_addc_u32 s33, s9, 0")
        for i in range(4):
            b = 160 + 16 * (n % 2) + 4 * i
            E(f"    global_load_dwordx4 v[{b}:{b+3}], v2, s[32:33]")
            E(f"    s_add_u32 s32, s32, 8192")
            E(f"    s_addc_u32 s33, s33, 0")
        E(f"    s_add_u32 s26, s24, {n*1024}")
        E(f"    s_addc_u32 s27, s25, 0")
        for rt in range(4):
            a = AS + slot * 16 + rt * 4
            E(f"    global_load_dwordx4 v[{a}:{a+3}], v3, s[26:27]")
            if rt < 3:
                E(f"    s_add_u32 s26, s26, {56*1024}")
                E(f"    s_addc_u32 s27, s27, 0")
    for os_ in range(2):
        E(f"    s_lshl_b32 s20, s16, 1")
        if os_:
            E(f"    s_add_u32 s20, s20, 1")
        dma(6, 20, 2)
        for hh in range(2):
            E(f"    s_lshl_b32 s21, s20, 1")
            if hh:
                E(f"    s_add_u32 s21, s21, 1")
            E(f"    s_lshl_b32 s31, s21, 11")
            E(f"    s_add_u32 s31, s31, {WS_KV}")
            E(f"    s_add_u32 s32, s12, s31")
            E(f"    s_addc_u32 s33, s13, 0")
            for i in range(8):
                E(f"    global_load_dword v{20+16*hh+i}, v4, s[32:33] offset:{i*256}")
            E(f"    s_add_u32 s32, s32, 65536")
            E(f"    s_addc_u32 s33, s33, 0")
            for i in range(8):
                E(f"    global_load_dword v{28+16*hh+i}, v4, s[32:33] offset:{i*256}")
            E(f"    s_lshl_b32 s31, s21, 7")
            E(f"    s_lshl_b32 s34, s14, 2")
            E(f"    s_add_u32 s31, s31, s34")
            E(f"    s_lshl_b32 s31, s31, 10")
            E(f"    s_add_u32 s31, s31, {WS_PQ}")
            E(f"    s_add_u32 s32, s12, s31")
            E(f"    s_addc_u32 s33, s13, 0")
            for rt in range(4):
                E(f"    global_load_dwordx4 v[{52+16*hh+4*rt}:{55+16*hh+4*rt}], v3, s[32:33] offset:{rt*1024}")
        E("    s_waitcnt vmcnt(0)")
        for hh in range(2):
            for i in range(4):
                E(f"    v_cvt_pk_bf16_f32 v{84+i}, v{20+16*hh+2*i}, v{21+16*hh+2*i}")
                E(f"    v_cvt_pk_bf16_f32 v{88+i}, v{28+16*hh+2*i}, v{29+16*hh+2*i}")
            for i in range(32):
                E(f"    v_mov_b32 v{160+i}, 0")
            nop(2)
            for rt in range(4):
                p = 52 + 16 * hh + 4 * rt
                E(f"    v_mfma_f32_16x16x32_bf16 v[{160+8*rt}:{163+8*rt}], v[84:87], v[{p}:{p+3}], v[{160+8*rt}:{163+8*rt}]")
                E(f"    v_mfma_f32_16x16x32_bf16 v[{164+8*rt}:{167+8*rt}], v[88:91], v[{p}:{p+3}], v[{164+8*rt}:{167+8*rt}]")
            nop(10)
            for rt in range(4):
                E(f"    v_add_f32 v{164+8*rt}, 0x358637bd, v{164+8*rt}")
                E(f"    v_rcp_f32 v{164+8*rt}, v{164+8*rt}")
            nop(1)
            for rt in range(4):
                for i in range(4):
                    E(f"    v_mul_f32 v{160+8*rt+i}, v{160+8*rt+i}, v{164+8*rt}")
                a = AS + 32 + rt * 4 + hh * 2
                E(f"    v_cvt_pk_bf16_f32 v{a}, v{160+8*rt}, v{161+8*rt}")
                E(f"    v_cvt_pk_bf16_f32 v{a+1}, v{162+8*rt}, v{163+8*rt}")
        bread(2)
        E("    s_waitcnt lgkmcnt(0)")
        mfmas(2)
        nop(2)
    E("    s_mul_i32 s20, s16, 7")
    hload(0)
    hload(1)
    E("    v_add_u32 v19, s17, v3")
    for n in range(7):
        later = min(7, n + 2) - (n + 1)
        E(f"    s_waitcnt vmcnt({8*later})")
        for i in range(4):
            b = 160 + 16 * (n % 2) + 4 * i
            E(f"    ds_write_b128 v19, v[{b}:{b+3}] offset:{(n%3)*4096+i*1024}")
        E("    s_waitcnt lgkmcnt(0)")
        if n + 2 < 7:
            hload(n + 2)
        bread(n % 3)
        E("    s_waitcnt lgkmcnt(0)")
        mfmas(n % 3)
    nop(12)
    E("    s_barrier")
    E("    s_lshl_b32 s31, s16, 14")
    E("    v_add_u32 v5, s31, v3")
    for i in range(16):
        E(f"    ds_write_b128 v5, v[{ACC+4*i}:{ACC+4*i+3}] offset:{i*1024}")
    E("    s_waitcnt lgkmcnt(0)")
    E("    s_barrier")
    E("    s_lshl_b32 s31, s16, 11")
    E("    v_add_u32 v5, s31, v3")
    E("    v_add_u32 v15, 0x10000, v5")
    for tt in range(2):
        for src in range(8):
            E(f"    ds_read_b128 v[{20+4*src}:{23+4*src}], v{5 if src < 4 else 15} offset:{(src&3)*16384+tt*1024}")
        E("    s_waitcnt lgkmcnt(0)")
        for src in range(1, 8):
            for i in range(4):
                E(f"    v_add_f32 v{20+i}, v{20+i}, v{20+4*src+i}")
        E("    s_lshr_b32 s31, s16, 1")
        E("    s_lshl_b32 s31, s31, 4")
        E("    s_lshl_b32 s34, s14, 6")
        E("    s_add_u32 s31, s31, s34")
        E("    v_and_b32 v6, 15, v1")
        E("    v_add_u32 v6, s31, v6")
        E("    v_lshlrev_b32 v6, 10, v6")
        E("    s_and_b32 s31, s16, 1")
        E("    s_lshl_b32 s31, s31, 6")
        E(f"    s_add_u32 s31, s31, {tt*32}")
        E("    s_lshl_b32 s34, s15, 7")
        E("    s_add_u32 s31, s31, s34")
        E("    v_lshrrev_b32 v7, 4, v1")
        E("    v_lshl_add_u32 v6, v7, 3, v6")
        E("    v_add_u32 v6, s31, v6")
        E("    global_load_dwordx2 v[60:61], v6, s[4:5]")
        E("    s_waitcnt vmcnt(0)")
        E("    v_lshlrev_b32 v62, 16, v60")
        E("    v_and_b32 v63, 0xffff0000, v60")
        E("    v_add_f32 v20, v20, v62")
        E("    v_add_f32 v21, v21, v63")
        E("    v_lshlrev_b32 v62, 16, v61")
        E("    v_and_b32 v63, 0xffff0000, v61")
        E("    v_add_f32 v22, v22, v62")
        E("    v_add_f32 v23, v23, v63")
        E("    v_cvt_pk_bf16_f32 v60, v20, v21")
        E("    v_cvt_pk_bf16_f32 v61, v22, v23")
        E("    global_store_dwordx2 v6, v[60:61], s[10:11]")
    E("L2_end:")
    E("    s_endpgm")


def descriptor(name, vgpr, sgpr=102):
    acc = (vgpr + 3) // 4 * 4
    E(f".amdhsa_kernel {name}")
    E(f"  .amdhsa_next_free_vgpr {vgpr}")
    E(f"  .amdhsa_next_free_sgpr {sgpr}")
    E(f"  .amdhsa_accum_offset {acc}")
    E("  .amdhsa_group_segment_fixed_size 0")
    E("  .amdhsa_kernarg_size 88")
    E("  .amdhsa_user_sgpr_count 2")
    E("  .amdhsa_user_sgpr_kernarg_segment_ptr 1")
    E("  .amdhsa_system_sgpr_workgroup_id_x 1")
    E(".end_amdhsa_kernel")


def main():
    E("; generated by gen.py")
    E("; @launch kernel=ln_kernel grid=(512,1,1) block=(256,1,1) lds=0")
    E("; @launch kernel=gemm1_kernel grid=(256,1,1) block=(512,1,1) lds=139264")
    E("; @launch kernel=gemm2_kernel grid=(256,1,1) block=(512,1,1) lds=131072")
    E('.amdgcn_target "amdgcn-amd-amdhsa--gfx950"')
    E(".text")
    gen_k0()
    gen_k1()
    gen_k2()
    E('.section .rodata,"a"')
    E(".p2align 6")
    descriptor("ln_kernel", 32, 32)
    descriptor("gemm1_kernel", 256)
    descriptor("gemm2_kernel", 256)
    open(OUT, "w").write("\n".join(lines) + "\n")


main()
```
